```python
import torch

def _softmax(x, axis=-1):
    return torch.softmax(x, dim=axis)
def _gelu(x):
    return torch.nn.functional.gelu(x, approximate="tanh")
def _silu(x):
    return torch.nn.functional.silu(x)
def _sigmoid(x):
    return torch.sigmoid(x)
def _layernorm(x, axis=-1, eps=1e-5):
    m = x.mean(dim=axis, keepdim=True)
    v = x.var(dim=axis, keepdim=True, unbiased=False)
    return (x - m) / torch.sqrt(v + eps)
def _scatter_add(tgt, idx, src, axis=0):
    return tgt.clone().index_add_(axis, idx, src)
def _segment_sum(src, seg, n):
    out = torch.zeros((n,) + src.shape[1:], dtype=src.dtype)
    return out.index_add_(0, seg, src)
def _pad(x, pw):
    flat = tuple(v for pair in reversed(pw) for v in pair)
    return torch.nn.functional.pad(x, flat)

kernel_name = 'recurrent_scan__gqa_block_cached__glu_gated_swiglu__prompt'

def setup_inputs():

    _w = (lambda a: (lambda t: t.to(torch.bfloat16) if t.is_floating_point() else t)(torch.as_tensor(a)))
    def _A_setup():
        B, Sq, D = 1, 2048, 576
        Hq, Hkv, Sk, Dh = 32, 16, 2048, 128
        assert Hq % Hkv == 0, (Hq, Hkv)
        return {
            "x": _w((lambda *s: torch.randn(*s, dtype=torch.bfloat16) * 0.05)(B, Sq, D)),
            "k_cache": _w((lambda *s: torch.randn(*s, dtype=torch.bfloat16) * 1.6)(B, Hkv, Sk, Dh)),
            "v_cache": _w((lambda *s: torch.randn(*s, dtype=torch.bfloat16) * 1.6)(B, Hkv, Sk, Dh)),
            "wq": _w((lambda *s: torch.randn(*s, dtype=torch.bfloat16) * 1.6)(D, Hq * Dh) * (D ** -0.5)),
            "wo": _w((lambda *s: torch.randn(*s, dtype=torch.bfloat16) * 1.6)(Hq * Dh, D) * ((Hq * Dh) ** -0.5)),
        }
    _A_in = _A_setup()

    def _B_setup():
        B, S, D, F = 1, 2048, 576, 4608
        return {
            "x": _w((lambda *s: torch.randn(*s, dtype=torch.bfloat16) * 0.05)(B, S, D)),
            "w1": _w((lambda *s: torch.randn(*s, dtype=torch.bfloat16) * 0.2)(D, F) * (2.0 / D) ** 0.5),
            "w3": _w((lambda *s: torch.randn(*s, dtype=torch.bfloat16) * 0.2)(D, F) * (2.0 / D) ** 0.5),
            "w2": _w((lambda *s: torch.randn(*s, dtype=torch.bfloat16) * 0.2)(F, D) * (2.0 / F) ** 0.5),
        }
    _B_in = _B_setup()

    return {
        "A_x": _A_in["x"],
        "A_k_cache": _A_in["k_cache"],
        "A_v_cache": _A_in["v_cache"],
        "A_wq": _A_in["wq"],
        "A_wo": _A_in["wo"],
        "B_x": _B_in["x"],
        "B_w1": _B_in["w1"],
        "B_w3": _B_in["w3"],
        "B_w2": _B_in["w2"],
    }

def reference(A_x, A_k_cache, A_v_cache, A_wq, A_wo, B_x, B_w1, B_w3, B_w2):
    def _A_ref(x, k_cache, v_cache, wq, wo):
        B, Sq, D = x.shape
        Hq, Dh = 32, 128
        Hkv = k_cache.shape[1]
        rep = Hq // Hkv
        q = (lambda x, *d: x.permute(*d))((x @ wq).reshape(B, Sq, Hq, Dh), 0, 2, 1, 3)
        k = (lambda x, n, axis: torch.repeat_interleave(x, n, dim=axis))(k_cache, rep, axis=1)
        v = (lambda x, n, axis: torch.repeat_interleave(x, n, dim=axis))(v_cache, rep, axis=1)
        scores = torch.einsum("bhqd,bhkd->bhqk", q, k) * (Dh ** -0.5)
        p = _softmax(scores, axis=-1)
        o = torch.einsum("bhqk,bhkd->bhqd", p, v)
        return (lambda x, *d: x.permute(*d))(o, 0, 2, 1, 3).reshape(B, Sq, Hq * Dh) @ wo

    def _B_ref(x, w1, w3, w2):
        gate = torch.einsum("bsd,df->bsf", x, w1)
        up = torch.einsum("bsd,df->bsf", x, w3)
        h = _silu(gate) * up
        out = torch.einsum("bsf,fd->bsd", h, w2)
        return out

    x = A_x
    xn = _layernorm(x, axis=-1)
    s = _A_ref(xn, A_k_cache, A_v_cache, A_wq, A_wo)
    g = _silu(_B_ref(xn, B_w1, B_w3, B_w2))
    return x + s * g
```

```python
import re
REG = re.compile(r'\b([vas])(\d+)\b|\b([vas])\[(\d+):(\d+)\]')
def regs(tok):
    out = []
    for m in REG.finditer(tok):
        if m.group(1): out.append((m.group(1), int(m.group(2))))
        else: out += [(m.group(3), i) for i in range(int(m.group(4)), int(m.group(5)) + 1)]
    if re.search(r'\bvcc\b', tok): out += [('s', 106), ('s', 107)]
    if re.search(r'\bm0\b', tok): out.append(('s', 124))
    if re.search(r'\bexec\b', tok): out += [('s', 126), ('s', 127)]
    return out
TRANS = ('v_exp_f32', 'v_rcp_f32', 'v_rsq_f32', 'v_sqrt_f32', 'v_log_f32')
def parse(line):
    line = line.split(';')[0].strip()
    if not line or line.endswith(':') or line.startswith('.'): return None
    sp = line.split(None, 1); op = sp[0]; rest = sp[1] if len(sp) > 1 else ''
    ops = [x.strip() for x in rest.split(',')]
    d = dict(op=op, line=line, dst=[], src=[], kind='other')
    if op.startswith('v_mfma'):
        d.update(kind='mfma', dst=regs(ops[0]), a=regs(ops[1]), b=regs(ops[2]), c=regs(ops[3]))
        d['src'] = d['a'] + d['b'] + d['c']; d['passes'] = 4 if '16x16x32' in op else 8
    elif op.startswith('ds_read') or op.startswith('ds_bpermute') or op.startswith('ds_swizzle'):
        d.update(kind='ds', dst=regs(ops[0]), src=regs(','.join(ops[1:])))
    elif op.startswith('ds_write'):
        d.update(kind='ds', src=regs(rest))
    elif op.startswith('buffer_load') or op.startswith('global_load'):
        if re.search(r'\blds\b', rest) or 'load_lds' in op:
            d.update(kind='vm', src=regs(rest) + [('s', 124)], dma=True)
        else: d.update(kind='vm', dst=regs(ops[0]), src=regs(','.join(ops[1:])))
    elif op.startswith('buffer_store') or op.startswith('global_store'):
        d.update(kind='vm', src=regs(rest), store=True)
        d['data'] = regs(ops[0]) if op.startswith('buffer') else regs(ops[1])
        d['wide'] = ('x4' in op or 'x3' in op)
    elif op.startswith('buffer_atomic') or op.startswith('global_atomic'):
        d.update(kind='vm', src=regs(rest), dst=regs(ops[0]) if 'sc0' in rest else [])
    elif op.startswith('buffer_inv') or op.startswith('buffer_wbl2'):
        d.update(kind='vm')
    elif op.startswith('s_load') or op.startswith('s_memtime') or op.startswith('s_memrealtime'):
        d.update(kind='smem', dst=regs(ops[0]), src=regs(','.join(ops[1:])))
    elif op in ('s_waitcnt', 's_nop', 's_barrier', 's_endpgm', 's_setprio', 's_sleep') or op.startswith('s_cbranch') or op == 's_branch':
        d.update(kind='ctl')
        if op.startswith('s_cbranch_vcc'): d['src'] = [('s',106),('s',107)]
    elif op.startswith('s_cmp') or op.startswith('s_bitcmp'):
        d.update(kind='salu', src=regs(rest))
    elif op.startswith('s_'):
        d.update(kind='salu', dst=regs(ops[0]), src=regs(','.join(ops[1:])))
        if 'saveexec' in op: d['dst'] += [('s',126),('s',127)]
    elif op.startswith('v_'):
        d.update(kind='valu', dst=regs(ops[0]), src=regs(','.join(ops[1:])))
        if op.startswith('v_fmac') or op.startswith('v_dot2c'): d['src'] += d['dst']
        if op.startswith('v_permlane') and 'swap' in op:
            d['dst'] = regs(rest); d['src'] = regs(rest); d['perm'] = True
        if op.startswith('v_add_co') or op.startswith('v_addc_co'): d['dst'] += regs(ops[1])
        d['trans'] = any(op.startswith(t) for t in TRANS)
        d['dpp'] = bool(re.search(r'quad_perm|row_|wave_', rest))
        if d['dpp']: d['src'] += d['dst']
        d['rl'] = op.startswith('v_readfirstlane') or op.startswith('v_readlane')
    else:
        raise ValueError("unknown op " + line)
    return d

def check(trace, name=''):
    errs = []
    ins = []
    for l in trace:
        for sub in l.split('\n'):
            p = parse(sub)
            if p: ins.append(p)
    pos = 0
    lastscc = ''
    last = {}
    vmq = []; lgq = []
    pend = {}
    def need(tag, rs, n, i, why):
        for r in rs:
            k = (tag, r)
            if k in last and pos - last[k][0] - 1 < (n(last[k][1]) if callable(n) else n):
                errs.append("%s: #%d '%s' too close (%d) after '%s' [%s]" % (name, i, I['line'], pos - last[k][0] - 1, last[k][2], why)); return
    for i, I in enumerate(ins):
        k = I['kind']
        allr = I['src'] + I['dst']
        for r in allr:
            if r in pend:
                if k in ('ds', 'vm', 'smem') and r in I['dst'] and r not in I['src'] and pend[r][0] == ('lg' if k != 'vm' else 'vm') and k != 'smem':
                    continue
                errs.append("%s: #%d '%s' touches %s%d with load pending '%s'" % (name, i, I['line'], r[0], r[1], pend[r][1]))
                break
        if k == 'mfma':
            need('valu', I['src'], 2, i, 'valu->mfma')
            need('mfma', I['a'] + I['b'], lambda p: {4: 8, 8: 12}[p[0]], i, 'mfma->AB')
            for r in I['c']:
                kk = ('mfma', r)
                if kk in last and last[kk][1][1] != tuple(I['c']):
                    need('mfma', [r], lambda p: {4: 6, 8: 10}[p[0]], i, 'mfma->C overlap'); break
            for r in I['dst']:
                kk = ('mfma', r)
                if kk in last and last[kk][1][1] != tuple(I['dst']) :
                    need('mfma', [r], lambda p: {4: 6, 8: 10}[p[0]], i, 'mfma WAW'); break
            need('valu', [('s',126)], 4, i, 'exec->mfma')
        elif k in ('valu', 'ds', 'vm'):
            need('mfma', allr, lambda p: {4: 8, 8: 12}[p[0]], i, 'mfma->valu/mem')
        if k == 'valu':
            need('mfmaC', I['dst'], lambda p: {4: 3, 8: 7}[p], i, 'mfma C WAR')
            if not I['trans']: need('trans', I['src'], 1, i, 'trans->valu')
            need('valu', [r for r in I['src'] if r[0] == 's'], 2, i, 'valu sgpr->valu')
            if I.get('dpp') or I.get('perm'): need('valu', [r for r in I['src'] if r[0] == 'v'], 2, i, 'valu->dpp/perm')
            if I.get('rl'): need('valu', [r for r in I['src'] if r[0] == 'v'], 1, i, 'valu->readlane')
            need('wstore', I['dst'], 2, i, 'store data WAR')
        if k in ('ds', 'vm'):
            need('trans', I['src'], 1, i, 'trans->mem')
            need('wstore', I['dst'], 1, i, 'store data WAR')
        if k == 'vm':
            need('valu', [r for r in I['src'] if r[0] == 's'], 5, i, 'valu sgpr->vmem')
            if I.get('dma'): need('salu', [('s', 124)], 1, i, 'm0->dma')
        if k in ('salu', 'ctl', 'smem'):
            need('valu', [r for r in I['src'] if r[0] == 's'], 1, i, 'valu sgpr->salu (conservative)')
        op = I['op']
        if op.startswith('s_cselect') or op.startswith('s_cbranch_scc'):
            if not (lastscc.startswith('s_cmp') or lastscc.startswith('s_andn2') or lastscc.startswith('s_bitcmp')):
                errs.append("%s: #%d '%s' reads SCC last written by %s" % (name, i, I['line'], lastscc))
        if op.startswith('s_addc') and not lastscc.startswith('s_add_u32'):
            errs.append("%s: #%d addc after %s" % (name, i, lastscc))
        if k == 'salu' and not any(op.startswith(x) for x in ('s_mov', 's_cselect', 's_mul', 's_getreg', 's_movk')): lastscc = op
        if k == 'mfma':
            for r in I['dst']: last[('mfma', r)] = (pos, (I['passes'], tuple(I['dst'])), I['line'])
            for r in I['c']: last[('mfmaC', r)] = (pos, I['passes'], I['line'])
        elif k == 'valu':
            for r in I['dst']:
                last[('valu', r)] = (pos, None, I['line'])
                if I['trans']: last[('trans', r)] = (pos, None, I['line'])
                else: last.pop(('trans', r), None)
                last.pop(('mfma', r), None)
        elif k == 'salu':
            for r in I['dst']:
                last[('salu', r)] = (pos, None, I['line']); last.pop(('valu', r), None)
        if k == 'vm':
            vmq.append(I['dst'])
            for r in I['dst']: pend[r] = ('vm', I['line'], len(vmq), id(I))
            vmq[-1] = (I['dst'], id(I))
            if I.get('store') and I['wide']:
                for r in I['data']: last[('wstore', r)] = (pos, None, I['line'])
            if len(vmq) > 63: errs.append("%s: #%d vmcnt overflow" % (name, i))
        if k in ('ds', 'smem'):
            lgq.append((I['dst'], id(I), k))
            for r in I['dst']: pend[r] = ('lg', I['line'], 0, id(I))
        if I['op'] == 's_waitcnt':
            m = re.search(r'vmcnt\((\d+)\)', I['line'])
            if m:
                n = int(m.group(1))
                while len(vmq) > n:
                    ds_, idi = vmq.pop(0)
                    for r in ds_:
                        if r in pend and pend[r][3] == idi: del pend[r]
            m = re.search(r'lgkmcnt\((\d+)\)', I['line'])
            if m:
                n = int(m.group(1))
                if n > 0 and any(x[2] == 'smem' for x in lgq): errs.append("%s: #%d counted lgkmcnt with smem outstanding" % (name, i))
                while len(lgq) > n:
                    ds_, idi, _ = lgq.pop(0)
                    for r in ds_:
                        if r in pend and pend[r][3] == idi: del pend[r]
        if I['op'] == 's_nop': pos += int(I['line'].split()[1], 0) + 1
        else: pos += 1
    return errs
```

```python
import re
from asmcheck import parse, check

class W:
    def __init__(self, kind, tags=(), auto=True, force=None):
        self.kind = kind; self.tags = tuple(tags); self.auto = auto; self.n = None; self.force = force
class I:
    def __init__(self, text, tag=None): self.text = text; self.tag = tag; self.p = parse(text)
class Mark:
    def __init__(self, name): self.name = name

def R(f, b, n=1): return "%s%d" % (f, b) if n == 1 else "%s[%d:%d]" % (f, b, b + n - 1)

class T:
    def __init__(self): self.l = []
    def __call__(self, x, tag=None):
        if isinstance(x, (W, I, Mark)): self.l.append(x)
        elif isinstance(x, (list, tuple)):
            for y in x: self(y)
        else:
            for s in x.split('\n'):
                s = s.strip()
                if s: self.l.append(I(s, tag))
    def mark(self, n): self.l.append(Mark(n))

def resolve(l):
    for kind in ('vm', 'lg'):
        isk = (lambda p: p['kind'] == 'vm') if kind == 'vm' else (lambda p: p['kind'] in ('ds', 'smem'))
        cap = 63 if kind == 'vm' else 15
        pat = r'vmcnt\((\d+)\)' if kind == 'vm' else r'lgkmcnt\((\d+)\)'
        q = []
        for idx, x in enumerate(l):
            if isinstance(x, I) and x.p:
                if isk(x.p): q.append(x)
                if x.p['op'] == 's_waitcnt':
                    m = re.search(pat, x.text)
                    if m: q = q[max(0, len(q) - int(m.group(1))):] if int(m.group(1)) else []
            elif isinstance(x, W) and x.kind == kind:
                needpos = -1
                for j, o in enumerate(q):
                    if o.tag is not None and o.tag in x.tags: needpos = j
                if x.auto:
                    touched = set()
                    for y in l[idx + 1:]:
                        if isinstance(y, W) and y.kind == kind and y.auto: break
                        if isinstance(y, I) and y.p:
                            touched.update(y.p['src'])
                            if not isk(y.p): touched.update(y.p['dst'])
                    for j, o in enumerate(q):
                        if touched.intersection(o.p['dst']): needpos = max(needpos, j)
                n = len(q) - 1 - needpos
                if x.force is not None: n = min(n, x.force)
                if any(o.p['kind'] == 'smem' for o in q[:needpos + 1]): n = 0
                x.n = min(n, cap); x.needed = needpos >= 0
                q = q[len(q) - x.n:] if x.n else []
def wtext(x): return "s_waitcnt %s(%d)" % ('vmcnt' if x.kind == 'vm' else 'lgkmcnt', x.n)
def texts(l): return [wtext(x) if isinstance(x, W) else x.text for x in l if not isinstance(x, Mark)]

def segments(l):
    segs = [('', [])]
    for x in l:
        if isinstance(x, Mark): segs.append((x.name, []))
        else: segs[-1][1].append(x)
    return segs

def finalize(t, name):
    resolve(t.l)
    segs = segments(t.l)
    groups = {}
    for n, s in segs:
        if n.startswith('loop:'): groups.setdefault(n.split(':')[1], []).append(s)
    for lab, its in groups.items():
        for s in its[1:]:
            assert len(s) == len(its[0]), (lab, len(s), len(its[0]))
        for k in range(len(its[0])):
            e = [s[k] for s in its]
            if isinstance(e[0], W):
                m = min(x.n for x in e)
                for x in e: x.n = m
            else:
                for x in e: assert x.text == e[0].text, (lab, x.text, e[0].text)
    errs = check(texts(t.l), name)
    for e in errs[:30]: print("ERR", e)
    assert not errs, "%d errors" % len(errs)
    out = []; seen = set()
    for n, s in segs:
        if n.startswith('loop:'):
            lab = n.split(':')[1]
            if lab in seen: continue
            seen.add(lab)
            out.append("%s:" % lab)
        out += texts(s)
    return "\n".join(out) + "\n"

def kd(name, vgpr, sgpr, accum):
    return ('.section .rodata,"a"\n.p2align 6\n.amdhsa_kernel %s\n  .amdhsa_next_free_vgpr %d\n  .amdhsa_next_free_sgpr %d\n'
            '  .amdhsa_accum_offset %d\n  .amdhsa_group_segment_fixed_size 0\n  .amdhsa_kernarg_size 96\n  .amdhsa_user_sgpr_count 2\n'
            '  .amdhsa_user_sgpr_kernarg_segment_ptr 1\n  .amdhsa_system_sgpr_workgroup_id_x 1\n.end_amdhsa_kernel\n.text\n') % (name, vgpr, sgpr, accum)
def head(name):
    return ".text\n.globl %s\n.p2align 8\n.type %s,@function\n%s:\n" % (name, name, name)
def srd(t, d, lo, hi, size, add=0):
    if add:
        t("s_add_u32 s%d, s%d, %d\ns_addc_u32 s%d, s%d, 0" % (d, lo, add, d + 1, hi))
    else:
        t("s_mov_b32 s%d, s%d\ns_mov_b32 s%d, s%d" % (d, lo, d + 1, hi))
    t("s_mov_b32 s%d, %d\ns_mov_b32 s%d, 0x20000" % (d + 2, size, d + 3))
```

```python
from fw import *
XN_OFF = 0; XN_SIZE = 2048 * 576 * 2
ACT_OFF = 4 << 20; ACT_SIZE = 32 * 272 * 4096
SLAB_OFF = 48 << 20
STAMP_OFF = 200 << 20

def red8(t, v, tmp):
    for dpp in ("quad_perm:[1,0,3,2]", "quad_perm:[2,3,0,1]", "row_half_mirror"):
        t("s_nop 1")
        t("v_add_f32_dpp v%d, v%d, v%d %s row_mask:0xf bank_mask:0xf" % (v, v, v, dpp))
def rb(t, v):
    t("v_cvt_pk_bf16_f32 v%d, v%d, v%d\nv_lshlrev_b32 v%d, 16, v%d" % (v, v, v, v, v))

def gen_k0():
    t = T()
    t("s_cmp_ge_u32 s2, 256\ns_cbranch_scc1 k0_end")
    t("s_load_dwordx2 s[4:5], s[0:1], 0\ns_load_dwordx2 s[6:7], s[0:1], 88")
    t("v_lshrrev_b32 v1, 3, v0\nv_and_b32 v2, 7, v0")
    t("v_mul_u32_u24 v3, 1152, v1\nv_lshl_add_u32 v3, v2, 4, v3")
    t("s_mul_i32 s3, s2, %d" % (8 * 1152))
    t("s_waitcnt lgkmcnt(0)")
    srd(t, 8, 4, 5, XN_SIZE)
    srd(t, 12, 6, 7, XN_SIZE, XN_OFF)
    for i in range(9):
        t("buffer_load_dwordx4 %s, v3, s[8:11], s3 offen offset:%d" % (R('v', 4 + 4 * i, 4), 128 * i))
    t("s_lshr_b32 s16, s2, 3\ns_mul_i32 s16, s16, %d" % (18 * 4096))
    t("s_lshr_b32 s17, s2, 1\ns_and_b32 s17, s17, 3\ns_lshl_b32 s17, s17, 10\ns_add_u32 s16, s16, s17")
    t("s_and_b32 s17, s2, 1\ns_lshl_b32 s17, s17, 7\ns_add_u32 s16, s16, s17")
    t("v_lshrrev_b32 v112, 2, v2\nv_lshlrev_b32 v112, 12, v112\nv_and_b32 v113, 3, v2\nv_lshl_add_u32 v112, v113, 8, v112\nv_lshl_add_u32 v112, v1, 4, v112")
    t("s_mov_b32 s18, 0xffff0000")
    t("v_mov_b32 v114, 0\nv_mov_b32 v115, 0")
    for i in range(9):
        t("s_waitcnt vmcnt(%d)" % (8 - i))
        for r in range(4):
            s = 4 + 4 * i + r; d = 40 + 2 * (4 * i + r)
            t("v_lshlrev_b32 v%d, 16, v%d\nv_and_b32 v%d, s18, v%d" % (d, s, d + 1, s))
            t("v_add_f32 v114, v114, v%d\nv_add_f32 v115, v115, v%d" % (d, d + 1))
    t("v_add_f32 v114, v114, v115")
    red8(t, 114, 116)
    t("v_mul_f32 v114, 0x3ae38e39, v114")
    t("v_mov_b32 v116, 0\nv_mov_b32 v117, 0")
    for k in range(36):
        d = 40 + 2 * k
        t("v_sub_f32 v118, v%d, v114\nv_sub_f32 v119, v%d, v114\nv_fmac_f32 v116, v118, v118\nv_fmac_f32 v117, v119, v119" % (d, d + 1))
    t("v_add_f32 v116, v116, v117")
    red8(t, 116, 118)
    t("v_mul_f32 v116, 0x3ae38e39, v116")
    rb(t, 116); rb(t, 114)
    t("v_add_f32 v116, 0x3727c5ac, v116")
    rb(t, 116)
    t("v_sqrt_f32 v116, v116\ns_nop 0")
    rb(t, 116)
    t("v_rcp_f32 v116, v116\ns_nop 0")
    for i in range(9):
        for r in range(4):
            s = 4 + 4 * i + r; d = 40 + 2 * (4 * i + r)
            t("v_sub_f32 v%d, v%d, v114\nv_sub_f32 v%d, v%d, v114\nv_cvt_pk_bf16_f32 v%d, v%d, v%d" % (d, d, d + 1, d + 1, s, d, d + 1))
            t("v_lshlrev_b32 v%d, 16, v%d\nv_and_b32 v%d, s18, v%d" % (d, s, d + 1, s))
            t("v_mul_f32 v%d, v%d, v116\nv_mul_f32 v%d, v%d, v116\nv_cvt_pk_bf16_f32 v%d, v%d, v%d" % (d, d, d + 1, d + 1, s, d, d + 1))
        t("buffer_store_dwordx4 %s, v112, s[12:15], s16 offen" % R('v', 4 + 4 * i, 4))
        t("s_add_u32 s16, s16, 8192")
    body = finalize(t, 'k0')
    return head("k0_kernel") + body + "k0_end:\ns_endpgm\n" + kd("k0_kernel", 120, 32, 120)
if __name__ == "__main__":
    print(gen_k0()[:600])
```

```python
from fw import *
from k0 import XN_OFF, XN_SIZE, ACT_OFF, ACT_SIZE, STAMP_OFF
MF = "v_mfma_f32_16x16x32_bf16"
SLOT = 53248
FLAG_LDS = 159744
sW, sQ0, sX, sDslot, sGreg, sQreg, sDelta, sRslot, sCnt, sK, sV, sW4k, sRerun, sT = 54, 55, 59, 60, 61, 62, 63, 64, 65, 66, 67, 68, 69, 70
sJ, sR, sOdd, sT64 = 50, 51, 52, 53
sKV0 = 76
sC = 78
def Gacc(mat, t, qb):
    return ('v', (2 * t + mat) * 16 + 4 * qb) if t < 7 else ('a', (2 * (t - 7) + mat) * 16 + 4 * qb)
def Qacc(db, qb): return ('a', 64 + db * 16 + 4 * qb)
def XN(buf, qb): return ('a', 192 + 16 * buf + 4 * qb)
def AF(slot): return ('a', 224 + 4 * slot)
vGd, vQd, vL16, vGa, vQa, vKd, vVd, vT = 224, 233, 234, 235, 236, 240, 244, 246
ASLOT = sum([list(range(7))] * 4 + [list(range(6))] * 4, [])
assert len(ASLOT) == 52
def S(b, kb, qb): return 32 * b + 16 * kb + 4 * qb
def P(b, qb): return 64 + 16 * b + 4 * qb
def NM(qb): return 96 + 4 * qb
def QF(qb, s): return 112 + 16 * qb + 4 * s
vL = 176; vKa = 180; vVa = 184
def O(db, qb): return 16 * db + 4 * qb
def KF(f): return 128 + 4 * f
def VF(db): return 160 + 4 * db
def LA(qb): return 192 + 4 * (qb - 2)
aONE = 200

def r4(x): return R(x[0], x[1], 4)

def stamp(t, i, on):
    if on: t("s_memtime s[%d:%d]" % (84 + 2 * i, 85 + 2 * i))

def tile_reads(x):
    ks, i = divmod(x, 26)
    d = AF(ASLOT[x])
    out = []
    for a in range(2):
        if i < 18:
            tt, mat = i >> 1, i & 1
            off = (2 * mat + ks) * 9216 + a * 4608 + 32 * tt; va = vGa
        else:
            db = i - 18
            off = 36864 + ks * 8192 + a * 4096 + 8 * (db & 1); va = vQa + (db >> 1)
        out.append(I("ds_read_b64_tr_b16 %s, v%d offset:%d" % (R(d[0], d[1] + 2 * a, 2), va, off)))
    return out

def w_dma(n):
    it = []
    tag = "W%d" % n
    for p in range(9):
        pre = "s_add_u32 m0, s%d, %d" % (sT, (p // 4) * 4096) if p % 4 == 0 else None
        it.append((pre, I("buffer_load_dwordx4 v%d, s[12:15], s%d offen offset:%d lds" % (vGd + p, sW, (p % 4) * 1024), tag)))
    for p in range(4):
        pre = "s_add_u32 m0, s%d, s%d" % (sDslot, sQreg) if p == 0 else None
        it.append((pre, I("buffer_load_dwordx4 v%d, s[16:19], s%d offen offset:%d lds" % (vQd, sQ0 + p, p * 1024), tag)))
    return it
def w_dma_pre(): return ["s_add_u32 s%d, s%d, s%d" % (sT, sDslot, sGreg)]
def w_dma_post():
    o = ["s_add_u32 s%d, s%d, %d" % (sW, sW, 64 * 9216)]
    o += ["s_add_u32 s%d, s%d, %d" % (sQ0 + p, sQ0 + p, 64 * 8192) for p in range(4)]
    o += ["s_add_u32 s%d, s%d, %d" % (sDslot, sDslot, SLOT), "s_cmp_ge_u32 s%d, %d" % (sDslot, 3 * SLOT), "s_cselect_b32 s%d, 0, s%d" % (sDslot, sDslot)]
    return o
def kv_dma(which, n):
    it = []
    base = (n % 4) * 16384 + (65536 if which == 'V' else 0)
    so = sK if which == 'K' else sV
    for p in range(4):
        pre = "s_add_u32 m0, s%d, %d" % (sW4k, base) if p == 0 else None
        va = vKd + p if which == 'K' else vVd + (p & 1)
        it.append((pre, I("buffer_load_dwordx4 v%d, %s, s%d offen offset:%d lds" % (va, "s[20:23]" if which == 'K' else "s[24:27]", so, p * 1024), "%s%d" % (which, n))))
    post = "s_add_u32 s%d, s%d, 16384" % (so, so)
    return it, post
def xn_loads(ks):
    return [I("buffer_load_dwordx4 %s, v%d, s[8:11], s%d offen offset:%d" % (r4(XN(ks & 1, qb)), vL16, sX, qb * 1024)) for qb in range(4)]

def gq_stage(t, n):
    G = 52 * 4
    sal = [[] for _ in range(G)]; fil = [[] for _ in range(G)]
    for tau in range(47):
        rd = tile_reads(tau + 5)
        fil[4 * tau + 0].append(rd[0]); fil[4 * tau + 1].append(rd[1])
    last = n == 8
    if not last:
        sal[4 * 47] += ["s_add_u32 s%d, s%d, %d" % (sRslot, sRslot, SLOT)]
        sal[4 * 47 + 1] += ["s_cmp_ge_u32 s%d, %d" % (sRslot, 3 * SLOT)]
        sal[4 * 47 + 2] += ["s_cselect_b32 s%d, 0x%x, %d" % (sDelta, (-2 * SLOT) & 0xffffffff, 0)]
        sal[4 * 48] += ["s_cselect_b32 s%d, 0, s%d" % (sRslot, sRslot)]
        sal[4 * 48 + 1] += ["s_cselect_b32 s%d, s%d, %d" % (sDelta, sDelta, SLOT)]
        upd = ["v_add_u32 v%d, s%d, v%d" % (v, sDelta, v) for v in [vGa] + [vQa + s for s in range(4)]]
        fil[4 * 48 + 1] += upd[0:1]; fil[4 * 48 + 2] += upd[1:3]; fil[4 * 48 + 3] += upd[3:5]
        sal[4 * 48 + 2] += [W('vm', ["W%d" % (n + 1)], auto=False)]
        sal[4 * 49] += ["s_barrier"]
        for k, x in enumerate([0, 1, 2, 3, 4]):
            rd = tile_reads(x)
            g = 4 * 49 + 2 * k
            fil[g].append(rd[0]); fil[g + 1].append(rd[1])
    for tau in range(52):
        sal[4 * tau + 3].append(W('lg', force=0 if (tau == 48 and not last) else None))
    for ks in range(2):
        gk = 2 * n + ks + 1
        if gk < 18:
            for q, x in enumerate(xn_loads(gk)): fil[4 * (26 * ks + q) + 2].append(x)
            sal[4 * (26 * ks + 4) + 0].append("s_add_u32 s%d, s%d, 4096" % (sX, sX))
            sal[4 * (26 * ks + 25) + 2].append(W('vm'))
    if n + 2 <= 8:
        items = w_dma(n + 2); sal[4 * 3 + 0] += w_dma_pre(); post = w_dma_post(); posts = {12: post}
    else:
        items = []; posts = {}
        for (wh, m) in ([('K', 0), ('K', 1), ('K', 2)] if n == 7 else [('K', 3), ('V', 0), ('V', 1)]):
            it, po = kv_dma(wh, m); items += it; posts[len(items) - 1] = [po]
    for k, (pre, d) in enumerate(items):
        tau = 4 + k
        if pre: sal[4 * tau + 1].append(pre)
        fil[4 * tau + 2].append(d)
        if k in posts:
            for q, x in enumerate(posts[k]): sal[4 * (tau + 1 + q) + 0].append(x)
    for g in range(G):
        tau, qb = divmod(g, 4); ks, i = divmod(tau, 26)
        acc = Gacc(i & 1, i >> 1, qb) if i < 18 else Qacc(i - 18, qb)
        t("%s %s, %s, %s, %s" % (MF, r4(acc), r4(AF(ASLOT[tau])), r4(XN(ks, qb)), r4(acc)))
        assert len(sal[g]) <= 1, (g, sal[g])
        t(sal[g]); t(fil[g])

def k_reads(c):
    return [I("ds_read_b128 %s, v%d offset:%d" % (R('a', KF(4 * kb + s), 4), vKa + s, ((c >> 1) % 4) * 16384 + (c & 1) * 8192 + kb * 4096)) for kb in range(2) for s in range(4)]
def v_reads(c):
    return [I("ds_read_b64_tr_b16 %s, v%d offset:%d" % (R('a', VF(db) + 2 * a, 2), vVa + db, ((c >> 1) % 4) * 16384 + (c & 1) * 8192 + a * 4096)) for db in range(8) for a in range(2)]
def qk_mfmas(b, czero=False):
    o = []
    for kb in range(2):
        for qb in range(4):
            d = R('v', S(b, kb, qb), 4)
            for s in range(4):
                c = d if s else ("0" if czero else R('v', NM(qb), 4))
                o.append("%s %s, %s, %s, %s" % (MF, d, R('a', KF(4 * kb + s), 4), R('v', QF(qb, s), 4), c))
    return o
def pv_mfmas(b, first=False):
    o = []
    for db in range(8):
        for qb in range(4):
            d = R('a', O(db, qb), 4)
            o.append("%s %s, %s, %s, %s" % (MF, d, R('a', VF(db), 4), R('v', P(b, qb), 4), "0" if first else d))
    for qb in (2, 3):
        d = R('a', LA(qb), 4)
        o.append("%s %s, %s, %s, %s" % (MF, d, R('a', aONE, 4), R('v', P(b, qb), 4), "0" if first else d))
    return o

def att_step(t, i):
    qk = i + 1 <= 63; pv = i >= 1; sm = i <= 63
    mf = (qk_mfmas((i + 1) & 1) if qk else [None] * 32) + (pv_mfmas((i - 1) & 1, first=(i == 1)) if pv else [None] * 34)
    types = list("ED" * 16) + list("EDEMEDEV" * 4) + list("VV")
    sal = [[] for _ in range(66)]; fil = [[] for _ in range(66)]
    ds1 = v_reads(i - 1) if pv else []
    ds2 = k_reads(i + 2) if i + 2 <= 63 else []
    n = i >> 1
    dma, post = [], None
    if i % 2 == 0 and n + 4 <= 32 and i <= 56: dma, post = kv_dma('K', n + 4)
    if i % 2 == 1 and n + 2 <= 31: dma, post = kv_dma('V', n + 2)
    exps = [];
    if sm:
        b = i & 1
        A_ = [(qb, kb, h) for qb in (0, 1) for kb in range(2) for h in range(2)]
        B_ = [(qb, kb, h) for qb in (2, 3) for kb in range(2) for h in range(2)]
        for x, y in zip(A_, B_): exps += [(x, 0), (x, 1), (y, 0), (y, 1)]
    ready = []
    for g in range(66):
        ty = types[g]
        cap = 0
        if ty == 'E':
            if exps:
                (qb, kb, h), e = exps.pop(0)
                r = S(b, kb, qb) + 2 * h + e
                fil[g].append("v_exp_f32 v%d, v%d" % (r, r))
                if qb < 2: ready.append((g + 1, "v_add_f32 v%d, v%d, v%d" % (vL + qb, vL + qb, r)))
                if e == 1: ready.append((g + 1, "v_cvt_pk_bf16_f32 v%d, v%d, v%d" % (P(b, qb) + 2 * kb + h, r - 1, r)))
        elif ty == 'D':
            q = ds1 if g < 32 else ds2
            if q: fil[g].append(q.pop(0)); cap = 1
            else: cap = 2
        elif ty == 'M':
            if dma:
                pre, d = dma.pop(0)
                if pre: sal[g - 1].append(pre)
                fil[g].append(d)
                if not dma: sal[g + 1].append(post)
            else: cap = 2
        else: cap = 2
        while cap and ready and ready[0][0] <= g:
            fil[g].append(ready.pop(0)[1]); cap -= 1
    assert not ready and not exps and not ds1 and not ds2 and not dma
    for g in (15, 31, 47, 65): sal[g].append(W('lg'))
    if i % 2 == 0 and i <= 62:
        sal[30].append(W('vm', ["K%d" % (n + 1), "V%d" % n], auto=False))
        sal[32].append("s_barrier")
    for g in range(66):
        if mf[g]: t(mf[g])
        elif fil[g] and g and fil[g - 1] and not sal[g] and 'v_exp' in str(fil[g - 1][-1]): t("s_nop 0")
        assert len(sal[g]) <= 1
        t(sal[g]); t(fil[g])

def xlane(t, op, v, tmp):
    for sw in ("v_permlane16_swap_b32", "v_permlane32_swap_b32"):
        t(["v_mov_b32 v%d, v%d" % (b, a) for a, b in zip(v, tmp)])
        t("s_nop 1")
        t(["%s v%d, v%d" % (sw, a, b) for a, b in zip(v, tmp)])
        t(["%s v%d, v%d, v%d" % (op, a, a, b) for a, b in zip(v, tmp)])

def tile_max(t, m, b, init):
    for qb in range(4):
        vals = [S(b, kb, qb) + r for kb in range(2) for r in range(4)]
        if init:
            t("v_max3_f32 v%d, v%d, v%d, v%d" % (m[qb], vals[0], vals[1], vals[2]))
            t("v_max3_f32 v%d, v%d, v%d, v%d" % (m[qb], m[qb], vals[3], vals[4]))
            t("v_max3_f32 v%d, v%d, v%d, v%d" % (m[qb], m[qb], vals[5], vals[6]))
            t("v_max_f32 v%d, v%d, v%d" % (m[qb], m[qb], vals[7]))
        else:
            for k in range(4): t("v_max3_f32 v%d, v%d, v%d, v%d" % (m[qb], m[qb], vals[2 * k], vals[2 * k + 1]))
def set_negm(t, m):
    for qb in range(4):
        for r in range(4): t("v_sub_f32 v%d, 0, v%d" % (NM(qb) + r, m[qb]))

def gen_k1(stamps=False):
    t = T()
    t("s_cmp_ge_u32 s2, 256\ns_cbranch_scc1 k1_end")
    stamp(t, 0, stamps)
    t("s_load_dwordx4 s[36:39], s[0:1], 8\ns_load_dwordx2 s[40:41], s[0:1], 24\ns_load_dwordx4 s[44:47], s[0:1], 48\ns_load_dwordx2 s[48:49], s[0:1], 88")
    L, Tm = vT, vT + 1
    t("v_lshrrev_b32 v%d, 6, v0\nv_and_b32 v%d, 63, v0\nv_lshlrev_b32 v%d, 4, v%d" % (Tm, L, vL16, L))
    t("v_readfirstlane_b32 s3, v%d" % Tm)
    t("s_and_b32 s%d, s2, 7\ns_lshl_b32 s%d, s%d, 2\ns_lshr_b32 s%d, s2, 3\ns_and_b32 s%d, s%d, 3\ns_add_u32 s%d, s%d, s%d" % (sJ, sJ, sJ, sR, sT, sR, sJ, sJ, sT))
    t("s_lshr_b32 s%d, s%d, 2\ns_and_b32 s%d, s%d, 1\ns_lshl_b32 s%d, s%d, 2\ns_add_u32 s%d, s%d, s3" % (sR, sR, sOdd, sJ, sT64, sR, sT64, sT64))
    t("s_mul_i32 s%d, s%d, %d" % (sX, sT64, 18 * 4096))
    t("s_lshl_b32 s%d, s3, 12" % sW4k)
    t("s_and_b32 s%d, s3, 1\ns_mul_i32 s%d, s%d, %d\ns_mul_i32 s%d, s%d, 288\ns_add_u32 s%d, s%d, s%d" % (sT, sW, sT, 32 * 9216, sT + 1, sJ, sW, sW, sT + 1))
    t("s_mul_i32 s%d, s3, 9216\ns_add_u32 s%d, s%d, 36864" % (sGreg, sQreg, sW4k))
    t("s_lshl_b32 s%d, s%d, 15\ns_lshr_b32 s%d, s3, 1\ns_lshl_b32 s%d, s%d, 18\ns_add_u32 s%d, s%d, s%d\ns_lshl_b32 s%d, s%d, 8\ns_add_u32 s%d, s%d, s%d"
      % (sQ0, sT, sT + 1, sT + 1, sT + 1, sQ0, sQ0, sT + 1, sT + 1, sJ, sQ0, sQ0, sT + 1))
    for p in range(1, 4): t("s_add_u32 s%d, s%d, %d" % (sQ0 + p, sQ0, p * 64512))
    t("s_lshr_b32 s%d, s%d, 1\ns_lshl_b32 s%d, s%d, 19\ns_add_u32 s%d, s%d, s%d\ns_mov_b32 s%d, s%d\ns_mov_b32 s%d, s%d" % (sKV0, sJ, sKV0, sKV0, sKV0, sKV0, sW4k, sK, sKV0, sV, sKV0))
    t("s_mov_b32 s%d, 0\ns_mov_b32 s%d, 0\ns_mov_b32 s%d, 0\ns_mov_b32 s%d, 0" % (sDslot, sRslot, sCnt, sRerun))
    t("s_lshl_b32 s%d, s%d, 5" % (sT + 2, sOdd))
    a, b, c = vT + 2, vT + 3, vT + 4
    for p in range(9):
        t("v_add_u32 v%d, %d, v%d" % (a, p * 1024, vL16))
        t("v_cvt_f32_u32 v%d, v%d\nv_add_f32 v%d, 0.5, v%d\nv_mul_f32 v%d, 0x3b638e39, v%d\nv_cvt_u32_f32 v%d, v%d" % (b, a, b, b, b, b, b, b))
        t("v_mul_u32_u24 v%d, 288, v%d\nv_sub_u32 v%d, v%d, v%d\nv_add_u32 v%d, s%d, v%d" % (c, b, a, a, c, a, sT + 2, a))
        t("v_subrev_u32 v%d, 288, v%d\nv_min_u32 v%d, v%d, v%d" % (c, a, a, a, c))
        t("v_bfe_u32 v%d, v%d, 2, 2\nv_lshlrev_b32 v%d, 3, v%d\nv_and_b32 v%d, 3, v%d\nv_add_u32 v%d, v%d, v%d" % (c, b, c, c, vGd + p, b, c, c, vGd + p))
        t("v_lshrrev_b32 v%d, 4, v%d\nv_lshl_add_u32 v%d, v%d, 2, v%d" % (b, b, c, b, c))
        t("v_mul_u32_u24 v%d, 9216, v%d\nv_add_u32 v%d, v%d, v%d" % (c, c, vGd + p, c, a))
        if p % 4: t("v_subrev_u32 v%d, %d, v%d" % (vGd + p, (p % 4) * 1024, vGd + p))
    r_, c_ = vT + 5, vT + 6
    t("v_lshrrev_b32 v%d, 4, v%d\nv_and_b32 v%d, 15, v%d" % (r_, L, c_, L))
    t("v_lshlrev_b32 v%d, 2, v%d\nv_xor_b32 v%d, v%d, v%d\nv_lshlrev_b32 v%d, 4, v%d\nv_lshl_add_u32 v%d, v%d, 13, v%d" % (a, r_, a, a, c_, a, a, vQd, r_, a))
    t("s_waitcnt lgkmcnt(0)")
    srd(t, 8, 48, 49, XN_SIZE, XN_OFF)
    t("s_cmp_lt_u32 s3, 2\ns_cselect_b32 s12, s44, s46\ns_cselect_b32 s13, s45, s47\ns_mov_b32 s14, %d\ns_mov_b32 s15, 0x20000" % (576 * 4608 * 2))
    srd(t, 16, 40, 41, 576 * 4096 * 2)
    t(xn_loads(0)); t("s_add_u32 s%d, s%d, 4096" % (sX, sX))
    for n in range(2):
        t(w_dma_pre())
        for pre, d in w_dma(n):
            if pre: t(pre); t("s_nop 0")
            t(d)
        t(w_dma_post())
    srd(t, 20, 36, 37, 8388608); srd(t, 24, 38, 39, 8388608); srd(t, 28, 48, 49, ACT_SIZE, ACT_OFF)
    for p in range(4):
        t("v_add_u32 v%d, %d, v%d\nv_xor_b32 v%d, v%d, v%d\nv_lshlrev_b32 v%d, 4, v%d\nv_lshl_add_u32 v%d, v%d, 8, v%d" % (a, 4 * p, r_, a, a, c_, a, a, vKd + p, r_, a))
    for p in range(2):
        t("v_add_u32 v%d, %d, v%d\nv_lshlrev_b32 v%d, 1, v%d\nv_xor_b32 v%d, v%d, v%d\nv_lshlrev_b32 v%d, 4, v%d\nv_lshl_add_u32 v%d, v%d, 8, v%d" % (a, 4 * p, r_, a, a, a, a, c_, a, a, vVd + p, r_, a))
    t("v_lshrrev_b32 v%d, 2, v%d\nv_and_b32 v%d, 3, v%d" % (a, L, b, L))
    t("v_mul_u32_u24 v%d, 288, v%d\nv_lshl_add_u32 v%d, v%d, 3, v%d" % (vGa, a, vGa, b, vGa))
    t("v_lshlrev_b32 v%d, 8, v%d\nv_lshl_add_u32 v%d, v%d, 4, v%d\nv_and_b32 v%d, 3, v%d" % (c, a, c, b, c, a, a))
    for s in range(4):
        t("v_xor_b32 v%d, %d, v%d\nv_lshl_add_u32 v%d, v%d, 6, v%d" % (b, s, a, vQa + s, b, c))
    t("v_mov_b32 v%d, %d\nv_mov_b32 v%d, 0\nds_write_b32 v%d, v%d" % (a, FLAG_LDS, b, a, b))
    for i in range(224): t("v_mov_b32 v%d, 0" % i)
    for i in range(192): t("v_accvgpr_write_b32 a%d, 0" % i)
    t(W('vm', ["W0"])); t("s_waitcnt lgkmcnt(0)\ns_barrier")
    stamp(t, 1, stamps)
    for x in range(5): t(tile_reads(x))
    t(W('lg', force=0 if stamps else None))
    t(".p2align 6")
    for n in range(9):
        if n < 7: t.mark("loop:k1_gq:%d" % n)
        gq_stage(t, n)
        if n < 7:
            t("s_add_u32 s%d, s%d, 1\ns_cmp_lt_u32 s%d, 7\ns_cbranch_scc1 k1_gq" % (sCnt, sCnt, sCnt))
        if n == 6: t.mark("end")
    stamp(t, 2, stamps)
    t("s_mov_b32 s%d, 0xbfb8aa3b\ns_mov_b32 s%d, 0x3e0293ee" % (sC, sC + 1))
    t("s_mul_i32 s%d, s%d, 272\ns_lshr_b32 s%d, s%d, 1\ns_mul_i32 s%d, s%d, 9\ns_add_u32 s%d, s%d, s%d\ns_add_u32 s%d, s%d, 132\ns_lshl_b32 s%d, s%d, 12"
      % (sT, sT64, sT + 1, sJ, sT + 1, sT + 1, sT, sT, sT + 1, sT, sT, sT + 2, sT))
    t("s_mul_i32 s%d, s%d, 5\ns_add_u32 s%d, s%d, s%d\ns_sub_u32 s%d, s%d, 4\ns_lshl_b32 s%d, s%d, 12" % (sT + 1, sOdd, sT, sT, sT + 1, sT, sT, sT, sT))
    t("s_lshl_b32 s%d, s%d, 3\nv_add_u32 v%d, s%d, v%d" % (sT + 1, sOdd, vT + 9, sT + 1, vL16))
    tmp = [vT + k for k in range(4)]
    def silu_tile(g, u):
        t(["v_mul_f32 v%d, s%d, v%d" % (tmp[r], sC, g + r) for r in range(4)])
        t(["v_exp_f32 v%d, v%d" % (tmp[r], tmp[r]) for r in range(4)])
        t(["v_mul_f32 v%d, v%d, v%d" % (g + r, g + r, u + r) for r in range(4)])
        t(["v_add_f32 v%d, 1.0, v%d" % (tmp[r], tmp[r]) for r in range(4)])
        t(["v_rcp_f32 v%d, v%d" % (tmp[r], tmp[r]) for r in range(4)])
        t("s_nop 0")
        t(["v_mul_f32 v%d, v%d, v%d" % (g + r, g + r, tmp[r]) for r in (0, 1, 2, 3)])
    def gv(mat, tt, qb):
        return Gacc(mat, tt if tt < 7 else tt - 7, qb)[1]
    for m in range(5):
        if m == 3:
            t("s_nop 1")
            for k in range(64): t("v_accvgpr_read_b32 v%d, a%d" % (k, k))
        for qb in range(4):
            tiles = [2 * m, 2 * m + 1] if m < 4 else [8]
            d = gv(1, tiles[0], qb)
            for tt in tiles: silu_tile(gv(0, tt, qb), gv(1, tt, qb))
            for k, tt in enumerate(tiles):
                g = gv(0, tt, qb)
                t("v_cvt_pk_bf16_f32 v%d, v%d, v%d\nv_cvt_pk_bf16_f32 v%d, v%d, v%d" % (d + 2 * k, g, g + 1, d + 2 * k + 1, g + 2, g + 3))
            if m < 4: t("buffer_store_dwordx4 %s, v%d, s[28:31], s%d offen offset:%d" % (R('v', d, 4), vL16, sT, qb * 1024))
            else: t("buffer_store_dwordx2 %s, v%d, s[28:31], s%d offen offset:%d" % (R('v', d, 2), vT + 9, sT + 2, qb * 1024))
        if m < 3: t("s_add_u32 s%d, s%d, 4096" % (sT, sT))
    for qb in range(4):
        for s in range(4):
            tq = [64 + k for k in range(8)]
            for k in range(8): t("v_accvgpr_read_b32 v%d, a%d" % (tq[k], Qacc(2 * s + (k >> 2), qb)[1] + (k & 3)))
            for k in range(8): t("v_mul_f32 v%d, s%d, v%d" % (tq[k], sC + 1, tq[k]))
            for k in range(4): t("v_cvt_pk_bf16_f32 v%d, v%d, v%d" % (QF(qb, s) + k, tq[2 * k], tq[2 * k + 1]))
    t("v_lshrrev_b32 v%d, 4, v%d\nv_and_b32 v%d, 15, v%d\nv_lshrrev_b32 v%d, 4, v%d" % (L, vL16, c_, L, r_, L))
    for s in range(4):
        t("v_add_u32 v%d, %d, v%d\nv_xor_b32 v%d, v%d, v%d\nv_lshlrev_b32 v%d, 4, v%d\nv_lshl_add_u32 v%d, v%d, 8, v%d" % (a, 4 * s, r_, a, a, c_, a, a, vKa + s, c_, a))
    t("v_lshrrev_b32 v%d, 2, v%d\nv_and_b32 v%d, 3, v%d\nv_lshlrev_b32 v%d, 8, v%d\nv_lshl_add_u32 v%d, v%d, 3, v%d\nv_add_u32 v%d, 0x10000, v%d\nv_and_b32 v%d, 7, v%d" % (a, L, b, L, c, a, c, b, c, c, c, a, a))
    for db in range(8):
        t("v_xor_b32 v%d, %d, v%d\nv_lshl_add_u32 v%d, v%d, 5, v%d" % (b, db, a, vVa + db, b, c))
    t("v_mov_b32 v%d, 0x3f803f80" % a)
    for k in range(4): t("v_accvgpr_write_b32 a%d, v%d" % (aONE + k, a))
    stamp(t, 3, stamps)
    t("k1_att:")
    t(W('vm', ["K0"], auto=False)); t("s_barrier")
    t(k_reads(0))
    t("v_mov_b32 v%d, 0\nv_mov_b32 v%d, 0" % (vL, vL + 1))
    t(W('lg', force=0 if stamps else None))
    q0 = qk_mfmas(0, czero=True); k1r = k_reads(1)
    for g in range(32):
        t(q0[g])
        if g == 15: t(W('lg'))
        if g >= 16 and g % 4 == 0: t(k1r[(g - 16) // 4])
    t(k1r[4:])
    t("s_nop 3")
    t("s_cmp_lg_u32 s%d, 0\ns_cbranch_scc1 k1_havemax" % sRerun)
    m = [vT + k for k in range(4)]; m2 = [vT + 4 + k for k in range(4)]
    tile_max(t, m, 0, True)
    xlane(t, "v_max_f32", m, m2)
    set_negm(t, m)
    t("k1_havemax:")
    for kb in range(2):
        for qb in range(4):
            for r in range(4): t("v_add_f32 v%d, v%d, v%d" % (S(0, kb, qb) + r, S(0, kb, qb) + r, NM(qb)))
    t("s_mov_b32 s%d, 0" % sCnt)
    t(W('lg'))
    stamp(t, 4, False)
    for i in range(65):
        if 2 <= i < 58 and (i - 2) % 8 == 0:
            if i == 2: t(".p2align 6")
            t.mark("loop:k1_al:%d" % i)
        att_step(t, i)
        if 2 <= i < 58 and (i - 2) % 8 == 7:
            t("s_add_u32 s%d, s%d, 1\ns_cmp_lt_u32 s%d, 7\ns_cbranch_scc1 k1_al" % (sCnt, sCnt, sCnt))
        if i == 57: t.mark("end")
    stamp(t, 4, stamps)
    l = [vL + k for k in range(4)]
    xlane(t, "v_add_f32", l[:2], m2[:2])
    t("v_accvgpr_read_b32 v%d, a%d\nv_accvgpr_read_b32 v%d, a%d" % (l[2], LA(2), l[3], LA(3)))
    t("s_mov_b32 s%d, 0x4f800000" % sT)
    t("v_max_f32 v%d, v%d, v%d\nv_add_f32 v%d, v%d, v%d\nv_add_f32 v%d, v%d, v%d\nv_add_f32 v%d, v%d, v%d" % (a, l[0], l[0], a, l[0], l[1], a, a, l[2], a, a, l[3]))
    t("v_cmp_nlt_f32 vcc, v%d, s%d" % (a, sT) if False else "v_cmp_ngt_f32 vcc, s%d, v%d" % (sT, a))
    t(["v_rcp_f32 v%d, v%d" % (x, x) for x in l])
    t("v_mov_b32 v%d, %d\nv_mov_b32 v%d, 1" % (a, FLAG_LDS, b))
    t("s_cbranch_vccz k1_ok\nds_write_b32 v%d, v%d\nk1_ok:" % (a, b))
    t("s_waitcnt lgkmcnt(0)\ns_barrier\nds_read_b32 v%d, v%d" % (c, a))
    t("s_mul_i32 s%d, s%d, 272\ns_lshl_b32 s%d, s%d, 2\ns_add_u32 s%d, s%d, s%d\ns_lshl_b32 s%d, s%d, 12" % (sT, sT64, sT + 1, sJ, sT, sT, sT + 1, sT, sT))
    k = 0
    for s in range(4):
        for qb in range(4):
            tq = [(k % 4) * 16 + x for x in range(8)]; d = (k % 4) * 16 + 8; k += 1
            for x in range(8): t("v_accvgpr_read_b32 v%d, a%d" % (tq[x], O(2 * s + (x >> 2), qb) + (x & 3)))
            for x in range(8): t("v_mul_f32 v%d, v%d, v%d" % (tq[x], l[qb], tq[x]))
            for x in range(4): t("v_cvt_pk_bf16_f32 v%d, v%d, v%d" % (d + x, tq[2 * x], tq[2 * x + 1]))
            t("buffer_store_dwordx4 %s, v%d, s[28:31], s%d offen offset:%d" % (R('v', d, 4), vL16, sT, qb * 1024))
        if s < 3: t("s_add_u32 s%d, s%d, 4096" % (sT, sT))
    t("s_waitcnt lgkmcnt(0)\nv_readfirstlane_b32 s%d, v%d\ns_nop 1" % (sT, c))
    t("s_andn2_b32 s%d, s%d, s%d\ns_cbranch_scc1 k1_fb" % (sT, sT, sRerun))
    if stamps:
        t("s_waitcnt vmcnt(0)")
        stamp(t, 5, True)
        t("s_memrealtime s[96:97]\ns_waitcnt lgkmcnt(0)")
        srd(t, 8, 48, 49, 1 << 20, STAMP_OFF)
        for k in range(1, 6): t("s_sub_u32 s%d, s%d, s84\nv_mov_b32 v%d, s%d" % (84 + 2 * k, 84 + 2 * k, k, 84 + 2 * k))
        t("v_mov_b32 v0, s84\nv_mov_b32 v6, s96\nv_mov_b32 v7, 0\nv_mov_b32 v8, 0")
        t("s_lshl_b32 s%d, s2, 2\ns_add_u32 s%d, s%d, s3\ns_lshl_b32 s%d, s%d, 6" % (sT, sT, sT, sT, sT))
        t("s_mov_b64 exec, 1\nbuffer_store_dwordx4 v[0:3], v8, s[8:11], s%d offen\nbuffer_store_dwordx4 v[4:7], v8, s[8:11], s%d offen offset:16" % (sT, sT))
    body = finalize(t, 'k1')
    f = T()
    f("k1_fb:\ns_waitcnt vmcnt(0) lgkmcnt(0)\ns_barrier")
    f("s_mov_b32 s%d, 1\ns_mov_b32 s%d, s%d\ns_mov_b32 s%d, 0" % (sRerun, sK, sKV0, sCnt))
    f(["v_mov_b32 v%d, 0xff800000" % x for x in m])
    f("k1_fbl:")
    it, po = kv_dma('K', 0)
    for pre, d in it:
        if pre: f(pre); f("s_nop 0")
        f(d)
    f(po); f("s_waitcnt vmcnt(0)\ns_barrier")
    for blk in range(2):
        f(k_reads(blk)); f("s_waitcnt lgkmcnt(0)"); f(qk_mfmas(0, czero=True)); f("s_nop 7"); tile_max(f, m, 0, False)
    f("s_barrier\ns_add_u32 s%d, s%d, 1\ns_cmp_lt_u32 s%d, 32\ns_cbranch_scc1 k1_fbl" % (sCnt, sCnt, sCnt))
    xlane(f, "v_max_f32", m, m2); set_negm(f, m)
    f("s_mov_b32 s%d, s%d\ns_mov_b32 s%d, s%d" % (sK, sKV0, sV, sKV0))
    for (wh, n) in [('K', 0), ('K', 1), ('K', 2), ('K', 3), ('V', 0), ('V', 1)]:
        it, po = kv_dma(wh, n)
        for pre, d in it:
            if pre: f(pre); f("s_nop 0")
            f(d)
        f(po)
    f("s_waitcnt vmcnt(0)\ns_branch k1_att")
    fb = finalize(f, 'k1fb')
    return head("k1_kernel") + body + "k1_end:\ns_endpgm\n" + fb + kd("k1_kernel", 512, 102, 256)
if __name__ == "__main__":
    s = gen_k1(True); print(len(s.split("\n")))
```

```python
from fw import *
from k0 import ACT_OFF, ACT_SIZE, SLAB_OFF, STAMP_OFF
MF = "v_mfma_f32_16x16x32_bf16"
ST = 36864
K2_LDS = 4 * ST + 64
sQ, sRB, sCB, sT64, sTile, sW, sB, sDslot, sRslot, sDelta, sCnt, sN, sGreg, sT = 50, 51, 52, 53, 54, 55, 56, 57, 58, 59, 60, 61, 62, 64
def ACC(t, b): return (2 * t + b) * 4
def BF(ks, b): return (ks % 8) * 8 + 4 * b
def AF(t): return 64 + 4 * t
vD, vL16, vA, vT = 72, 81, 82, 84
LOOK = 7
def stamp(t, i, on):
    if on: t("s_memtime s[%d:%d]" % (84 + 2 * i, 85 + 2 * i))
def reads(x):
    ks, t = divmod(x, 9)
    return [I("ds_read_b64_tr_b16 %s, v%d offset:%d" % (R('a', AF(t) + 2 * a, 2), vA, ks * 9216 + a * 4608 + 32 * t)) for a in range(2)]
def w_dma(n):
    it = []
    for p in range(9):
        pre = "s_add_u32 m0, s%d, %d" % (sT, (p // 4) * 4096) if p % 4 == 0 else None
        it.append((pre, I("buffer_load_dwordx4 v%d, s[12:15], s%d offen offset:%d lds" % (vD + p, sW, (p % 4) * 1024), "W%d" % n)))
    return it
def w_pre(): return ["s_add_u32 s%d, s%d, s%d" % (sT, sDslot, sGreg)]
def w_post():
    return ["s_add_u32 s%d, s%d, %d" % (sW, sW, 128 * 1152), "s_add_u32 s%d, s%d, %d" % (sDslot, sDslot, ST),
            "s_cmp_ge_u32 s%d, %d" % (sDslot, 4 * ST), "s_cselect_b32 s%d, 0, s%d" % (sDslot, sDslot)]
def b_loads(ks):
    return [I("buffer_load_dwordx4 %s, v%d, s[8:11], s%d offen offset:%d" % (R('a', BF(ks, b), 4), vL16, sB, b * 1024)) for b in range(2)]

def stage(t, n):
    G = 72
    sal = [[] for _ in range(G)]; vm = [None] * G; ds = [[] for _ in range(G)]; va = [[] for _ in range(G)]
    for k in range(4):
        gk = 4 * n + k
        bl = b_loads(gk + 7)
        vm[18 * k + 1] = bl[0]; vm[18 * k + 3] = bl[1]
        sal[18 * k + 4].append("s_add_u32 s%d, s%d, 4096" % (sB, sB))
        sal[18 * k + 16].append(W('vm'))
    sal[18 + 0].append(W('vm', ["W%d" % (n + 1)], auto=False))
    sal[18 + 2].append("s_barrier")
    sal[18 + 3].append(w_pre()[0])
    pos = [18 + 6, 18 + 9, 18 + 12, 18 + 15, 36 + 6, 36 + 9, 36 + 12, 36 + 15, 54 + 6]
    for (pre, d), g in zip(w_dma(n + 3), pos):
        if pre: sal[g - 1].append(pre)
        vm[g] = d
    for q, x in enumerate(w_post()): sal[54 + 7 + q + (1 if q >= 1 else 0)].append(x)
    cross = 2 * (36 - LOOK)
    sal[36 + 0].append("s_add_u32 s%d, s%d, %d" % (sRslot, sRslot, ST))
    sal[36 + 1].append("s_cmp_ge_u32 s%d, %d" % (sRslot, 4 * ST))
    sal[36 + 2].append("s_cselect_b32 s%d, 0x%x, 0" % (sDelta, (-3 * ST) & 0xffffffff))
    sal[36 + 3].append("s_cselect_b32 s%d, 0, s%d" % (sRslot, sRslot))
    sal[36 + 7].append("s_max_i32 s%d, s%d, s%d" % (sT + 1, sDelta, sDelta) if False else "s_cmp_eq_u32 s%d, 0" % sDelta)
    sal[36 + 10].append("s_cselect_b32 s%d, %d, s%d" % (sDelta, ST, sDelta))
    q = []
    for tau in range(36):
        x = tau + LOOK
        rd = reads(x % 36)
        q += [(2 * tau, rd[0], x), (2 * tau, rd[1], x)]
    upd_done = False
    for g in range(G):
        if vm[g] is not None: continue
        cap = 2
        while cap and q and q[0][0] <= g:
            if q[0][2] >= 36 and not upd_done:
                if ds[g] or cap < 2:
                    va[g].append("v_add_u32 v%d, s%d, v%d" % (vA, sDelta, vA)); upd_done = True; cap = 0; break
                va[g].append("v_add_u32 v%d, s%d, v%d" % (vA, sDelta, vA)); upd_done = True; cap = 0; break
            ds[g].append(q.pop(0)[1]); cap -= 1
            if not (q and q[0][0] + 1 <= g): break
    assert not q, len(q)
    for g in range(G):
        if g % 6 == 5:
            gg = g
            while sal[gg]: gg -= 1
            sal[gg].append(W('lg'))
    for g in range(G):
        k, r = divmod(g, 18); tt, b = divmod(r, 2)
        acc = R('v', ACC(tt, b), 4)
        t("%s %s, %s, %s, %s" % (MF, acc, R('a', AF(tt), 4), R('a', BF(4 * n + k, b), 4), acc))
        assert len(sal[g]) <= 1, (g, sal[g])
        t(sal[g]); t(ds[g]); t(va[g])
        if vm[g] is not None: t(vm[g])

def gen_k2(stamps=False):
    t = T()
    t("s_cmp_ge_u32 s2, 256\ns_cbranch_scc1 k2_end")
    stamp(t, 0, stamps)
    t("s_load_dwordx2 s[36:37], s[0:1], 0\ns_load_dwordx2 s[38:39], s[0:1], 32\ns_load_dwordx4 s[40:43], s[0:1], 64\ns_load_dwordx4 s[44:47], s[0:1], 80")
    L, a, b, c = vT, vT + 1, vT + 2, vT + 3
    t("v_lshrrev_b32 v%d, 6, v0\nv_and_b32 v%d, 63, v0\nv_lshlrev_b32 v%d, 4, v%d" % (a, L, vL16, L))
    t("v_readfirstlane_b32 s3, v%d" % a)
    t("s_and_b32 s%d, s2, 3\ns_bfe_u32 s%d, s2, 0x10002\ns_lshl_b32 s%d, s%d, 3\ns_lshr_b32 s%d, s2, 5\ns_add_u32 s%d, s%d, s%d\ns_bfe_u32 s%d, s2, 0x20003"
      % (sQ, sRB, sRB, sRB, sT, sRB, sRB, sT, sCB))
    t("s_lshl_b32 s%d, s%d, 2\ns_add_u32 s%d, s%d, s%d" % (sTile, sRB, sTile, sTile, sCB))
    t("s_lshl_b32 s%d, s%d, 1\ns_lshr_b32 s%d, s3, 1\ns_add_u32 s%d, s%d, s%d" % (sT64, sRB, sT, sT64, sT64, sT))
    sNk, sK0, sA0 = sT + 2, sT + 3, sT + 4
    t("s_cmp_lt_u32 s%d, 2\ns_cselect_b32 s%d, 64, 72\ns_cselect_b32 s%d, 0, 128\ns_and_b32 s%d, s%d, 1\ns_mul_i32 s%d, s%d, s%d\ns_add_u32 s%d, s%d, s%d"
      % (sQ, sNk, sA0, sK0, sQ, sK0, sK0, sNk, sA0, sA0, sK0))
    t("s_lshr_b32 s%d, s%d, 3" % (sN, sNk))
    t("s_mul_i32 s%d, s%d, 272\ns_add_u32 s%d, s%d, s%d\ns_add_u32 s10, s%d, s%d\ns_lshl_b32 s10, s10, 12\ns_lshl_b32 s%d, s%d, 12" % (sB, sT64, sB, sB, sA0, sB, sNk, sB, sB))
    t("s_and_b32 s%d, s3, 1\ns_lshl_b32 s%d, s%d, 11\ns_add_u32 s%d, s%d, s%d" % (sT, sT, sT, sB, sB, sT))
    t("s_add_u32 s%d, s%d, s3\ns_mul_i32 s%d, s%d, %d\ns_mul_i32 s%d, s%d, 288\ns_add_u32 s%d, s%d, s%d" % (sW, sK0, sW, sW, ST, sT, sCB, sW, sW, sT))
    t("s_add_u32 s14, s%d, s%d\ns_mul_i32 s14, s14, %d" % (sK0, sNk, ST))
    t("s_mul_i32 s%d, s3, 9216\ns_mov_b32 s%d, 0\ns_mov_b32 s%d, 0\ns_mov_b32 s%d, 0" % (sGreg, sDslot, sRslot, sCnt))
    for p in range(9):
        t("v_add_u32 v%d, %d, v%d" % (a, p * 1024, vL16))
        t("v_cvt_f32_u32 v%d, v%d\nv_add_f32 v%d, 0.5, v%d\nv_mul_f32 v%d, 0x3b638e39, v%d\nv_cvt_u32_f32 v%d, v%d" % (b, a, b, b, b, b, b, b))
        t("v_mul_u32_u24 v%d, %d, v%d\nv_add_u32 v%d, v%d, v%d" % (b, 1152 - 288, b, vD + p, a, b))
        if p % 4: t("v_subrev_u32 v%d, %d, v%d" % (vD + p, (p % 4) * 1024, vD + p))
    t("s_waitcnt lgkmcnt(0)")
    t("s_add_u32 s8, s46, %d\ns_addc_u32 s9, s47, 0\ns_mov_b32 s11, 0x20000" % ACT_OFF)
    t("s_cmp_lt_u32 s%d, 2\ns_cselect_b32 s12, s38, s40\ns_cselect_b32 s13, s39, s41\ns_mov_b32 s15, 0x20000" % sQ)
    def dma_all(n):
        t(w_pre())
        for pre, d in w_dma(n):
            if pre: t(pre); t("s_nop 0")
            t(d)
        t(w_post())
    dma_all(0)
    for ks in range(4): t(b_loads(ks)); t("s_add_u32 s%d, s%d, 4096" % (sB, sB))
    dma_all(1)
    for ks in range(4, 7): t(b_loads(ks)); t("s_add_u32 s%d, s%d, 4096" % (sB, sB))
    dma_all(2)
    srd(t, 16, 36, 37, 2048 * 1152); srd(t, 20, 42, 43, 2048 * 1152); srd(t, 24, 44, 45, 256)
    srd(t, 28, 46, 47, 64 * 4 * 73728, SLAB_OFF)
    t("v_lshrrev_b32 v%d, 2, v%d\nv_and_b32 v%d, 3, v%d\nv_mul_u32_u24 v%d, 288, v%d\nv_lshl_add_u32 v%d, v%d, 3, v%d" % (a, L, b, L, vA, a, vA, b, vA))
    for i in range(72): t("v_mov_b32 v%d, 0" % i)
    t(W('vm', ["W0"])); t("s_barrier")
    stamp(t, 1, stamps)
    for x in range(LOOK): t(reads(x))
    t(W('lg', force=0 if stamps else None))
    t(".p2align 6")
    for it in range(9):
        t.mark("loop:k2_l:%d" % it)
        stage(t, 2 * it); stage(t, 2 * it + 1)
        t("s_add_u32 s%d, s%d, 1\ns_cmp_lt_u32 s%d, s%d\ns_cbranch_scc1 k2_l" % (sCnt, sCnt, sCnt, sN))
    t.mark("end")
    stamp(t, 2, stamps)
    sS = sT + 5
    t("s_lshl_b32 s%d, s%d, 4\ns_add_u32 s%d, s%d, s3\ns_mul_i32 s%d, s%d, 18432" % (sS, sTile, sS, sS, sS, sS))
    t("s_mul_i32 s%d, s%d, 73728\ns_add_u32 s%d, s%d, s%d" % (sT, sQ, sT, sT, sS))
    t("s_waitcnt vmcnt(0) lgkmcnt(0)\ns_nop 3")
    for k in range(18):
        t("buffer_store_dwordx4 %s, v%d, s[28:31], s%d offen offset:%d sc1" % (R('v', 4 * k, 4), vL16, sT, (k % 4) * 1024))
        if k % 4 == 3: t("s_add_u32 s%d, s%d, 4096" % (sT, sT))
    t("v_mov_b32 v%d, %d\nv_mov_b32 v%d, 1\nv_mov_b32 v%d, 0\ns_lshl_b32 s%d, s%d, 2" % (a, 4 * ST, b, c, sT, sTile))
    t("s_waitcnt vmcnt(0)\ns_barrier")
    t("s_cmp_lg_u32 s3, 0\ns_cbranch_scc1 k2_w")
    t("s_mov_b64 exec, 1\nbuffer_atomic_add v%d, v%d, s[24:27], s%d offen sc0 sc1\ns_waitcnt vmcnt(0)\nds_write_b32 v%d, v%d\ns_waitcnt lgkmcnt(0)\ns_mov_b64 exec, -1" % (b, c, sT, a, b))
    t("k2_w:\ns_barrier\nds_read_b32 v%d, v%d\ns_waitcnt lgkmcnt(0)\nv_readfirstlane_b32 s%d, v%d\ns_nop 1" % (b, a, sT, b))
    stamp(t, 3, stamps); stamp(t, 4, stamps)
    if stamps: t('s_waitcnt lgkmcnt(0)')
    t("s_cmp_lg_u32 s%d, 3\ns_cbranch_scc1 k2_done" % sT)
    P1, P2, X = 88, 160, 232
    def ld(dst, f, x):
        t("s_xor_b32 s%d, s%d, %d\ns_mul_i32 s%d, s%d, 73728\ns_add_u32 s%d, s%d, s%d" % (sT, sQ, x, sT, sT, sT, sT, sS))
        for k in range(18):
            t("buffer_load_dwordx4 %s, v%d, s[28:31], s%d offen offset:%d sc1" % (R(f, dst + 4 * k, 4), vL16, sT, (k % 4) * 1024))
            if k % 4 == 3: t("s_add_u32 s%d, s%d, 4096" % (sT, sT))
    ld(P1, 'v', 1); ld(P2, 'v', 2); ld(0, 'a', 3)
    t("v_and_b32 v%d, 15, v%d\nv_lshrrev_b32 v%d, 4, v%d\nv_mul_u32_u24 v%d, 1152, v%d\nv_lshl_add_u32 v%d, v%d, 3, v%d\nv_add_u32 v%d, %d, v%d" % (a, L, b, L, a, a, a, b, a, b, 16 * 1152, a))
    sO = sT + 6
    t("s_lshl_b32 s%d, s%d, 1\ns_and_b32 s%d, s3, 1\ns_add_u32 s%d, s%d, s%d\ns_mul_i32 s%d, s%d, %d\ns_mul_i32 s%d, s%d, 288\ns_add_u32 s%d, s%d, s%d"
      % (sO, sT64, sT, sO, sO, sT, sO, sO, 32 * 1152, sT, sCB, sO, sO, sT))
    t("s_waitcnt vmcnt(36)")
    for i in range(72): t("v_add_f32 v%d, v%d, v%d" % (i, i, P1 + i))
    for k in range(18):
        tt, bb = divmod(k, 2)
        t("buffer_load_dwordx2 %s, v%d, s[16:19], s%d offen offset:%d" % (R('a', 80 + 2 * k, 2), b if bb else a, sO, 32 * tt))
    t("s_waitcnt vmcnt(18)")
    for i in range(72): t("v_accvgpr_read_b32 v%d, a%d\nv_add_f32 v%d, v%d, v%d" % (P1 + i, i, P2 + i, P2 + i, P1 + i))
    t("s_mov_b32 s%d, 0xbfb8aa3b\ns_mov_b32 s%d, 0xffff0000\ns_waitcnt vmcnt(0)" % (sT, sT + 1))
    t("s_cmp_lt_u32 s%d, 2\ns_cbranch_scc0 k2_fB" % sQ)
    def fin(tr, sv, fv):
        for k in range(18):
            tt, bb = divmod(k, 2)
            e = [P1 + 8 * (k % 4) + r for r in range(4)]; xx = [P1 + 8 * (k % 4) + 4 + r for r in range(4)]
            s_ = [sv + 4 * k + r for r in range(4)]; f_ = [fv + 4 * k + r for r in range(4)]
            tr(["v_mul_f32 v%d, s%d, v%d" % (e[r], sT, f_[r]) for r in range(4)])
            tr(["v_exp_f32 v%d, v%d" % (e[r], e[r]) for r in range(4)])
            tr(["v_mul_f32 v%d, v%d, v%d" % (s_[r], s_[r], f_[r]) for r in range(4)])
            tr(["v_add_f32 v%d, 1.0, v%d" % (e[r], e[r]) for r in range(4)])
            tr(["v_rcp_f32 v%d, v%d" % (e[r], e[r]) for r in range(4)])
            tr("v_accvgpr_read_b32 v%d, a%d\nv_accvgpr_read_b32 v%d, a%d" % (xx[1], 80 + 2 * k, xx[3], 81 + 2 * k))
            tr("v_lshlrev_b32 v%d, 16, v%d\nv_lshlrev_b32 v%d, 16, v%d\nv_and_b32 v%d, s%d, v%d\nv_and_b32 v%d, s%d, v%d" % (xx[0], xx[1], xx[2], xx[3], xx[1], sT + 1, xx[1], xx[3], sT + 1, xx[3]))
            tr(["v_fmac_f32 v%d, v%d, v%d" % (xx[r], s_[r], e[r]) for r in range(4)])
            tr("v_cvt_pk_bf16_f32 v%d, v%d, v%d\nv_cvt_pk_bf16_f32 v%d, v%d, v%d" % (e[0], xx[0], xx[1], e[1], xx[2], xx[3]))
            tr("buffer_store_dwordx2 %s, v%d, s[20:23], s%d offen offset:%d" % (R('v', e[0], 2), b if bb else a, sO, 32 * tt))
    fin(t, 0, P2)
    if stamps: t("s_waitcnt vmcnt(0)"); stamp(t, 4, True)
    t("k2_done:")
    if stamps:
        stamp(t, 5, True)
        t("s_memrealtime s[96:97]\ns_waitcnt lgkmcnt(0)")
        srd(t, 8, 46, 47, 1 << 20, STAMP_OFF + 65536)
        for k in range(1, 6): t("s_sub_u32 s%d, s%d, s84\nv_mov_b32 v%d, s%d" % (84 + 2 * k, 84 + 2 * k, k, 84 + 2 * k))
        t("v_mov_b32 v0, s84\nv_mov_b32 v6, s96\nv_mov_b32 v7, 0\nv_mov_b32 v8, 0")
        t("s_lshl_b32 s%d, s2, 2\ns_add_u32 s%d, s%d, s3\ns_lshl_b32 s%d, s%d, 6" % (sT, sT, sT, sT, sT))
        t("s_mov_b64 exec, 1\nbuffer_store_dwordx4 v[0:3], v8, s[8:11], s%d offen\nbuffer_store_dwordx4 v[4:7], v8, s[8:11], s%d offen offset:16" % (sT, sT))
    body = finalize(t, 'k2')
    f = T(); f("k2_fB:"); fin(f, P2, 0)
    if stamps: f("s_waitcnt vmcnt(0)"); stamp(f, 4, True)
    f("s_branch k2_done")
    return head("k2_kernel") + body + "k2_end:\ns_endpgm\n" + finalize(f, 'k2b') + kd("k2_kernel", 376, 102, 256)
if __name__ == "__main__":
    s = gen_k2(True); print(len(s.split("\n")))
    i = s.index("k2_l:"); print(s[i:i+3000])
```

```python
import sys
from k0 import gen_k0
from k1 import gen_k1
NAME = "recurrent_scan__gqa_block_cached__glu_gated_swiglu__prompt"
def build(out, stamps=False, k2=True, **kw):
    ref = open("cdna_kernels/%s.s.ref" % NAME).read().split("\n")
    hdr = [l for l in ref if l.startswith(";") and "@launch" not in l and "Override launch" not in l and "grid=ceil" not in l]
    s = "\n".join(hdr) + "\n"
    s += "; @launch kernel=k0_kernel grid=(256,1,1) block=(64,1,1) lds=0\n"
    s += "; @launch kernel=k1_kernel grid=(256,1,1) block=(256,1,1) lds=163840\n"
    if k2:
        from k2 import gen_k2, K2_LDS
        s += "; @launch kernel=k2_kernel grid=(256,1,1) block=(256,1,1) lds=%d\n" % K2_LDS
    s += '.amdgcn_target "amdgcn-amd-amdhsa--gfx950"\n'
    s += gen_k0() + gen_k1(stamps)
    if k2: s += gen_k2(stamps)
    open(out, "w").write(s)
if __name__ == "__main__":
    build(sys.argv[1], stamps="stamps" in sys.argv, k2="nok2" not in sys.argv)
```

```python
import re
from asmcheck import parse, check

class W:
    def __init__(self, kind, tags=(), auto=True, force=None):
        self.kind = kind; self.tags = tuple(tags); self.auto = auto; self.n = None; self.force = force
class I:
    def __init__(self, text, tag=None): self.text = text; self.tag = tag; self.p = parse(text)
class Mark:
    def __init__(self, name): self.name = name

def R(f, b, n=1): return "%s%d" % (f, b) if n == 1 else "%s[%d:%d]" % (f, b, b + n - 1)

class T:
    def __init__(self): self.l = []
    def __call__(self, x, tag=None):
        if isinstance(x, (W, I, Mark)): self.l.append(x)
        elif isinstance(x, (list, tuple)):
            for y in x: self(y)
        else:
            for s in x.split('\n'):
                s = s.strip()
                if s: self.l.append(I(s, tag))
    def mark(self, n): self.l.append(Mark(n))

def resolve(l):
    for kind in ('vm', 'lg'):
        isk = (lambda p: p['kind'] == 'vm') if kind == 'vm' else (lambda p: p['kind'] in ('ds', 'smem'))
        cap = 63 if kind == 'vm' else 15
        pat = r'vmcnt\((\d+)\)' if kind == 'vm' else r'lgkmcnt\((\d+)\)'
        q = []
        for idx, x in enumerate(l):
            if isinstance(x, I) and x.p:
                if isk(x.p) and x.tag != 'cond': q.append(x)
                if x.p['op'] == 's_waitcnt':
                    m = re.search(pat, x.text)
                    if m: q = q[max(0, len(q) - int(m.group(1))):] if int(m.group(1)) else []
            elif isinstance(x, W) and x.kind == kind:
                needpos = -1
                for j, o in enumerate(q):
                    if o.tag is not None and o.tag in x.tags: needpos = j
                if x.auto:
                    touched = set()
                    for y in l[idx + 1:]:
                        if isinstance(y, W) and y.kind == kind and y.auto: break
                        if isinstance(y, I) and y.p:
                            touched.update(y.p['src'])
                            if not isk(y.p): touched.update(y.p['dst'])
                    for j, o in enumerate(q):
                        if touched.intersection(o.p['dst']): needpos = max(needpos, j)
                n = len(q) - 1 - needpos
                if x.force is not None: n = min(n, x.force)
                if any(o.p['kind'] == 'smem' for o in q[:needpos + 1]): n = 0
                x.n = min(n, cap); x.needed = needpos >= 0
                q = q[len(q) - x.n:] if x.n else []
def wtext(x): return "s_waitcnt %s(%d)" % ('vmcnt' if x.kind == 'vm' else 'lgkmcnt', x.n)
def texts(l): return [wtext(x) if isinstance(x, W) else x.text for x in l if not isinstance(x, Mark)]

def segments(l):
    segs = [('', [])]
    for x in l:
        if isinstance(x, Mark): segs.append((x.name, []))
        else: segs[-1][1].append(x)
    return segs

def finalize(t, name):
    resolve(t.l)
    segs = segments(t.l)
    groups = {}
    for n, s in segs:
        if n.startswith('loop:'): groups.setdefault(n.split(':')[1], []).append(s)
    for lab, its in groups.items():
        for s in its[1:]:
            assert len(s) == len(its[0]), (lab, len(s), len(its[0]))
        for k in range(len(its[0])):
            e = [s[k] for s in its]
            if isinstance(e[0], W):
                m = min(x.n for x in e)
                for x in e: x.n = m
            else:
                for x in e: assert x.text == e[0].text, (lab, x.text, e[0].text)
    errs = check(texts(t.l), name)
    for e in errs[:30]: print("ERR", e)
    assert not errs, "%d errors" % len(errs)
    out = []; seen = set()
    for n, s in segs:
        if n.startswith('loop:'):
            lab = n.split(':')[1]
            if lab in seen: continue
            seen.add(lab)
            out.append("%s:" % lab)
        out += texts(s)
    return "\n".join(out) + "\n"

def kd(name, vgpr, sgpr, accum):
    return ('.section .rodata,"a"\n.p2align 6\n.amdhsa_kernel %s\n  .amdhsa_next_free_vgpr %d\n  .amdhsa_next_free_sgpr %d\n'
            '  .amdhsa_accum_offset %d\n  .amdhsa_group_segment_fixed_size 0\n  .amdhsa_kernarg_size 96\n  .amdhsa_user_sgpr_count 2\n'
            '  .amdhsa_user_sgpr_kernarg_segment_ptr 1\n  .amdhsa_system_sgpr_workgroup_id_x 1\n.end_amdhsa_kernel\n.text\n') % (name, vgpr, sgpr, accum)
def head(name):
    return ".text\n.globl %s\n.p2align 8\n.type %s,@function\n%s:\n" % (name, name, name)
def srd(t, d, lo, hi, size, add=0):
    if add:
        t("s_add_u32 s%d, s%d, %d\ns_addc_u32 s%d, s%d, 0" % (d, lo, add, d + 1, hi))
    else:
        t("s_mov_b32 s%d, s%d\ns_mov_b32 s%d, s%d" % (d, lo, d + 1, hi))
    t("s_mov_b32 s%d, %d\ns_mov_b32 s%d, 0x20000" % (d + 2, size, d + 3))

class Stamps:
    def __init__(self, on, base=80): self.on = on; self.n = 0; self.base = base
    def __call__(self, t, wait=True):
        if self.on:
            if self.n == 0: t("s_memrealtime s[98:99]")
            t("s_memtime s[%d:%d]" % (self.base + 2 * self.n, self.base + 2 * self.n + 1)); self.n += 1
            assert self.n <= 9
            if wait: t("s_waitcnt lgkmcnt(0)")
    def dump(self, t, ws_lo, off, sT):
        if not self.on: return
        t("s_waitcnt vmcnt(0)"); self(t)
        t("s_memrealtime s[100:101]\ns_waitcnt lgkmcnt(0)")
        srd(t, 8, ws_lo, ws_lo + 1, 1 << 20, off)
        for k in range(16): t("v_mov_b32 v%d, 0" % k)
        for k in range(1, self.n): t("s_sub_u32 s%d, s%d, s%d\nv_mov_b32 v%d, s%d" % (self.base + 2 * k, self.base + 2 * k, self.base, k, self.base + 2 * k))
        t("v_mov_b32 v0, s100\nv_mov_b32 v11, s98\nv_mov_b32 v16, 0")
        t("s_lshl_b32 s%d, s2, 2\ns_add_u32 s%d, s%d, s3\ns_lshl_b32 s%d, s%d, 6" % (sT, sT, sT, sT, sT))
        t("s_mov_b64 exec, 1")
        for k in range(3): t("buffer_store_dwordx4 v[%d:%d], v16, s[8:11], s%d offen offset:%d" % (4 * k, 4 * k + 3, sT, 16 * k))
```

```python
from fw import *
XN_OFF = 0; XN_SIZE = 2048 * 576 * 2
ACT_OFF = 4 << 20; ACT_SIZE = 32 * 272 * 4096
SLAB_OFF = 48 << 20
STAMP_OFF = 200 << 20
WP_OFF = 72 << 20; WP_PLANE = 272 * 9216

def red8(t, v, tmp):
    for dpp in ("quad_perm:[1,0,3,2]", "quad_perm:[2,3,0,1]", "row_half_mirror"):
        t("s_nop 1")
        t("v_add_f32_dpp v%d, v%d, v%d %s row_mask:0xf bank_mask:0xf" % (v, v, v, dpp))
def rb(t, v):
    t("v_cvt_pk_bf16_f32 v%d, v%d, v%d\nv_lshlrev_b32 v%d, 16, v%d" % (v, v, v, v, v))

OPT = set()
def gen_k0(stamps=False):
    t = T(); st = Stamps(stamps)
    t("s_cmp_ge_u32 s2, 256\ns_cbranch_scc1 k0_end")
    st(t, False)
    t("s_load_dwordx2 s[4:5], s[0:1], 0\ns_load_dwordx2 s[6:7], s[0:1], 88")
    t("s_load_dwordx2 s[20:21], s[0:1], 24\ns_load_dwordx4 s[24:27], s[0:1], 48")
    t("v_lshrrev_b32 v1, 3, v0\nv_and_b32 v2, 7, v0")
    t("v_mul_u32_u24 v3, 1152, v1\nv_lshl_add_u32 v3, v2, 4, v3")
    t("s_mul_i32 s3, s2, %d" % (8 * 1152))
    t("s_waitcnt lgkmcnt(0)")
    srd(t, 8, 4, 5, XN_SIZE)
    srd(t, 12, 6, 7, XN_SIZE, XN_OFF)
    for i in range(9):
        t("buffer_load_dwordx4 %s, v3, s[8:11], s3 offen offset:%d" % (R('v', 4 + 4 * i, 4), 128 * i))
    if 'notouch' not in OPT:
        srd(t, 28, 24, 25, 576 * 9216); srd(t, 32, 26, 27, 576 * 9216); srd(t, 36, 20, 21, 576 * 8192)
        t("s_and_b32 s40, s2, 7\ns_lshr_b32 s41, s2, 3\ns_mul_i32 s42, s41, %d\ns_mul_i32 s43, s40, 1152\ns_add_u32 s42, s42, s43" % (18 * 9216))
        t("s_mul_i32 s44, s41, %d\ns_lshl_b32 s43, s40, 10\ns_add_u32 s44, s44, s43" % (18 * 8192))
        for k in range(3):
            t("v_add_u32 v120, %d, v0\nv_mul_u32_u24 v121, 7282, v120\nv_lshrrev_b32 v121, 16, v121\nv_mul_u32_u24 v122, 9, v121\nv_sub_u32 v122, v120, v122" % (64 * k))
            t("v_mul_u32_u24 v121, 9216, v121\nv_lshl_add_u32 v121, v122, 7, v121")
            if k == 2: t("v_cmp_gt_u32 vcc, 162, v120\nv_mov_b32 v122, 0x7fffffff\ns_nop 1\nv_cndmask_b32 v121, v122, v121, vcc")
            t("buffer_load_dword v%d, v121, s[28:31], s42 offen\nbuffer_load_dword v%d, v121, s[32:35], s42 offen" % (124 + 3 * k, 125 + 3 * k), 'cond')
            t("v_lshrrev_b32 v121, 3, v120\nv_lshlrev_b32 v121, 13, v121\nv_and_b32 v122, 7, v120\nv_lshl_add_u32 v121, v122, 7, v121")
            if k == 2: t("v_cmp_gt_u32 vcc, 144, v120\nv_mov_b32 v122, 0x7fffffff\ns_nop 1\nv_cndmask_b32 v121, v122, v121, vcc")
            t("buffer_load_dword v%d, v121, s[36:39], s44 offen" % (126 + 3 * k), 'cond')
    NT = 0 if 'notouch' in OPT else 9
    t("s_lshr_b32 s16, s2, 3\ns_mul_i32 s16, s16, %d" % (18 * 4096))
    t("s_lshr_b32 s17, s2, 1\ns_and_b32 s17, s17, 3\ns_lshl_b32 s17, s17, 10\ns_add_u32 s16, s16, s17")
    t("s_and_b32 s17, s2, 1\ns_lshl_b32 s17, s17, 7\ns_add_u32 s16, s16, s17")
    t("v_lshrrev_b32 v112, 2, v2\nv_lshlrev_b32 v112, 12, v112\nv_and_b32 v113, 3, v2\nv_lshl_add_u32 v112, v113, 8, v112\nv_lshl_add_u32 v112, v1, 4, v112")
    t("s_mov_b32 s18, 0xffff0000")
    t("v_mov_b32 v114, 0\nv_mov_b32 v115, 0")
    for i in range(9):
        t("s_waitcnt vmcnt(%d)" % (8 - i + NT))
        for r in range(4):
            s = 4 + 4 * i + r; d = 40 + 2 * (4 * i + r)
            t("v_lshlrev_b32 v%d, 16, v%d\nv_and_b32 v%d, s18, v%d" % (d, s, d + 1, s))
            t("v_add_f32 v114, v114, v%d\nv_add_f32 v115, v115, v%d" % (d, d + 1))
    t("v_add_f32 v114, v114, v115")
    red8(t, 114, 116)
    t("v_mul_f32 v114, 0x3ae38e39, v114")
    t("v_mov_b32 v116, 0\nv_mov_b32 v117, 0")
    for k in range(36):
        d = 40 + 2 * k
        t("v_sub_f32 v118, v%d, v114\nv_sub_f32 v119, v%d, v114\nv_fmac_f32 v116, v118, v118\nv_fmac_f32 v117, v119, v119" % (d, d + 1))
    t("v_add_f32 v116, v116, v117")
    red8(t, 116, 118)
    t("v_mul_f32 v116, 0x3ae38e39, v116")
    rb(t, 116); rb(t, 114)
    t("v_add_f32 v116, 0x3727c5ac, v116")
    rb(t, 116)
    t("v_sqrt_f32 v116, v116\ns_nop 0")
    rb(t, 116)
    t("v_rcp_f32 v116, v116\ns_nop 0")
    for i in range(9):
        for r in range(4):
            s = 4 + 4 * i + r; d = 40 + 2 * (4 * i + r)
            t("v_sub_f32 v%d, v%d, v114\nv_sub_f32 v%d, v%d, v114\nv_cvt_pk_bf16_f32 v%d, v%d, v%d" % (d, d, d + 1, d + 1, s, d, d + 1))
            t("v_lshlrev_b32 v%d, 16, v%d\nv_and_b32 v%d, s18, v%d" % (d, s, d + 1, s))
            t("v_mul_f32 v%d, v%d, v116\nv_mul_f32 v%d, v%d, v116\nv_cvt_pk_bf16_f32 v%d, v%d, v%d" % (d, d, d + 1, d + 1, s, d, d + 1))
        t("buffer_store_dwordx4 %s, v112, s[12:15], s16 offen" % R('v', 4 + 4 * i, 4))
        t("s_add_u32 s16, s16, 8192")
    t('s_mov_b32 s3, 0'); st.dump(t, 6, STAMP_OFF + 131072, 50)
    body = finalize(t, 'k0')
    return head("k0_kernel") + body + "k0_end:\ns_endpgm\n" + kd("k0_kernel", 136, 102, 136)
if __name__ == "__main__":
    print(gen_k0()[:600])
```

```python
from fw import *
from k0 import XN_OFF, XN_SIZE, ACT_OFF, ACT_SIZE, STAMP_OFF, WP_OFF, WP_PLANE
OPT = set()
MF = "v_mfma_f32_16x16x32_bf16"
SLOT = 53248
FLAG_LDS = 159744
sW, sQ0, sX, sDslot, sGreg, sQreg, sDelta, sRslot, sCnt, sK, sV, sW4k, sRerun, sT = 54, 55, 59, 60, 61, 62, 63, 64, 65, 66, 67, 68, 69, 70
sJ, sR, sOdd, sT64 = 50, 51, 52, 53
sKV0 = 76
sC = 78
def Gacc(mat, t, qb):
    return ('v', (2 * t + mat) * 16 + 4 * qb) if t < 7 else ('a', (2 * (t - 7) + mat) * 16 + 4 * qb)
def Qacc(db, qb): return ('a', 64 + db * 16 + 4 * qb)
def XN(buf, qb): return ('a', 192 + 16 * buf + 4 * qb)
def AF(slot): return ('a', 224 + 4 * slot)
vGd, vQd, vL16, vGa, vQa, vKd, vVd, vT = 224, 233, 234, 235, 236, 240, 244, 246
ASLOT = sum([list(range(7))] * 4 + [list(range(6))] * 4, [])
assert len(ASLOT) == 52
def S(b, kb, qb): return 32 * b + 16 * kb + 4 * qb
def P(b, qb): return 64 + 16 * b + 4 * qb
def NM(qb): return 96 + 4 * qb
def QF(qb, s): return 112 + 16 * qb + 4 * s
vL = 176; vKa = 180; vVa = 184
def O(db, qb): return 16 * db + 4 * qb
def KF(f): return 128 + 4 * f
def VF(db): return 160 + 4 * db
def LA(qb): return 192 + 4 * (qb - 2)
aONE = 200

def r4(x): return R(x[0], x[1], 4)


def tile_reads(x):
    ks, i = divmod(x, 26)
    d = AF(ASLOT[x])
    out = []
    for a in range(2):
        if i < 18:
            tt, mat = i >> 1, i & 1
            off = (2 * mat + ks) * 9216 + a * 4608 + 32 * tt; va = vGa
        else:
            db = i - 18
            off = 36864 + ks * 8192 + a * 4096 + 8 * (db & 1); va = vQa + (db >> 1)
        out.append(I("ds_read_b64_tr_b16 %s, v%d offset:%d" % (R(d[0], d[1] + 2 * a, 2), va, off)))
    return out

def w_dma(n):
    it = []
    tag = "W%d" % n
    for p in range(9):
        pre = "s_add_u32 m0, s%d, %d" % (sT, (p // 4) * 4096) if p % 4 == 0 else None
        it.append((pre, I("buffer_load_dwordx4 v%d, s[12:15], s%d offen offset:%d lds" % (vGd + p, sW, (p % 4) * 1024), tag)))
    for p in range(4):
        pre = "s_add_u32 m0, s%d, s%d" % (sDslot, sQreg) if p == 0 else None
        it.append((pre, I("buffer_load_dwordx4 v%d, s[16:19], s%d offen offset:%d lds" % (vQd, sQ0 + p, p * 1024), tag)))
    return it
def w_dma_pre(): return ["s_add_u32 s%d, s%d, s%d" % (sT, sDslot, sGreg)]
def w_dma_post():
    o = ["s_add_u32 s%d, s%d, %d" % (sW, sW, 64 * 9216)]
    o += ["s_add_u32 s%d, s%d, %d" % (sQ0 + p, sQ0 + p, 64 * 8192) for p in range(4)]
    o += ["s_add_u32 s%d, s%d, %d" % (sDslot, sDslot, SLOT), "s_cmp_ge_u32 s%d, %d" % (sDslot, 3 * SLOT), "s_cselect_b32 s%d, 0, s%d" % (sDslot, sDslot)]
    return o
def kv_dma(which, n):
    it = []
    base = (n % 4) * 16384 + (65536 if which == 'V' else 0)
    so = sK if which == 'K' else sV
    for p in range(4):
        pre = "s_add_u32 m0, s%d, %d" % (sW4k, base) if p == 0 else None
        va = vKd + p if which == 'K' else vVd + (p & 1)
        it.append((pre, I("buffer_load_dwordx4 v%d, %s, s%d offen offset:%d lds" % (va, "s[20:23]" if which == 'K' else "s[24:27]", so, p * 1024), "%s%d" % (which, n))))
    post = "s_add_u32 s%d, s%d, 16384" % (so, so)
    return it, post
def xn_loads(ks):
    return [I("buffer_load_dwordx4 %s, v%d, s[8:11], s%d offen offset:%d" % (r4(XN(ks & 1, qb)), vL16, sX, qb * 1024)) for qb in range(4)]

def gq_stage(t, n):
    G = 52 * 4
    sal = [[] for _ in range(G)]; fil = [[] for _ in range(G)]
    for tau in range(47):
        rd = tile_reads(tau + 5)
        fil[4 * tau + 0].append(rd[0]); fil[4 * tau + 1].append(rd[1])
    last = n == 8
    if not last:
        sal[4 * 47] += ["s_add_u32 s%d, s%d, %d" % (sRslot, sRslot, SLOT)]
        sal[4 * 47 + 1] += ["s_cmp_ge_u32 s%d, %d" % (sRslot, 3 * SLOT)]
        sal[4 * 47 + 2] += ["s_cselect_b32 s%d, 0x%x, %d" % (sDelta, (-2 * SLOT) & 0xffffffff, 0)]
        sal[4 * 48] += ["s_cselect_b32 s%d, 0, s%d" % (sRslot, sRslot)]
        sal[4 * 48 + 1] += ["s_cselect_b32 s%d, s%d, %d" % (sDelta, sDelta, SLOT)]
        upd = ["v_add_u32 v%d, s%d, v%d" % (v, sDelta, v) for v in [vGa] + [vQa + s for s in range(4)]]
        fil[4 * 48 + 1] += upd[0:1]; fil[4 * 48 + 2] += upd[1:3]; fil[4 * 48 + 3] += upd[3:5]
        sal[4 * 48 + 2] += [W('vm', ["W%d" % (n + 1)], auto=False)]
        sal[4 * 49] += ["s_barrier"]
        for k, x in enumerate([0, 1, 2, 3, 4]):
            rd = tile_reads(x)
            g = 4 * 49 + 2 * k
            fil[g].append(rd[0]); fil[g + 1].append(rd[1])
    for tau in range(52):
        sal[4 * tau + 3].append(W('lg', force=0 if (tau == 48 and not last) else None))
    for ks in range(2):
        gk = 2 * n + ks + 1
        if gk < 18:
            for q, x in enumerate(xn_loads(gk)): fil[4 * (26 * ks + q) + 2].append(x)
            sal[4 * (26 * ks + 4) + 0].append("s_add_u32 s%d, s%d, 4096" % (sX, sX))
            sal[4 * (26 * ks + 25) + 2].append(W('vm'))
    if n + 2 <= 8:
        items = w_dma(n + 2); sal[4 * 3 + 0] += w_dma_pre(); post = w_dma_post(); posts = {12: post}
    else:
        items = []; posts = {}
        for (wh, m) in ([('K', 0), ('K', 1), ('K', 2)] if n == 7 else [('K', 3), ('V', 0), ('V', 1)]):
            it, po = kv_dma(wh, m); items += it; posts[len(items) - 1] = [po]
    for k, (pre, d) in enumerate(items):
        tau = 4 + k
        if pre: sal[4 * tau + 1].append(pre)
        fil[4 * tau + 2].append(d)
        if k in posts:
            for q, x in enumerate(posts[k]): sal[4 * (tau + 1 + q) + 0].append(x)
    for g in range(G):
        tau, qb = divmod(g, 4); ks, i = divmod(tau, 26)
        acc = Gacc(i & 1, i >> 1, qb) if i < 18 else Qacc(i - 18, qb)
        t("%s %s, %s, %s, %s" % (MF, r4(acc), r4(AF(ASLOT[tau])), r4(XN(ks, qb)), r4(acc)))
        assert len(sal[g]) <= 1, (g, sal[g])
        t(sal[g]); t(fil[g])

def k_reads(c):
    return [I("ds_read_b128 %s, v%d offset:%d" % (R('a', KF(4 * kb + s), 4), vKa + s, ((c >> 1) % 4) * 16384 + (c & 1) * 8192 + kb * 4096)) for kb in range(2) for s in range(4)]
def v_reads(c):
    return [I("ds_read_b64_tr_b16 %s, v%d offset:%d" % (R('a', VF(db) + 2 * a, 2), vVa + db, ((c >> 1) % 4) * 16384 + (c & 1) * 8192 + a * 4096)) for db in range(8) for a in range(2)]
def qk_mfmas(b, czero=False):
    o = []
    for kb in range(2):
        for qb in range(4):
            d = R('v', S(b, kb, qb), 4)
            for s in range(4):
                c = d if s else ("0" if czero else R('v', NM(qb), 4))
                o.append("%s %s, %s, %s, %s" % (MF, d, R('a', KF(4 * kb + s), 4), R('v', QF(qb, s), 4), c))
    return o
def pv_mfmas(b, first=False):
    o = []
    for db in range(8):
        for qb in range(4):
            d = R('a', O(db, qb), 4)
            o.append("%s %s, %s, %s, %s" % (MF, d, R('a', VF(db), 4), R('v', P(b, qb), 4), "0" if first else d))
    for qb in (2, 3):
        d = R('a', LA(qb), 4)
        o.append("%s %s, %s, %s, %s" % (MF, d, R('a', aONE, 4), R('v', P(b, qb), 4), "0" if first else d))
    return o

def att_step(t, i):
    qk = i + 1 <= 63; pv = i >= 1; sm = i <= 63
    mf = (qk_mfmas((i + 1) & 1) if qk else [None] * 32) + (pv_mfmas((i - 1) & 1, first=(i == 1)) if pv else [None] * 34)
    types = list("ED" * 16) + list("EDEMEDEV" * 4) + list("VV")
    sal = [[] for _ in range(66)]; fil = [[] for _ in range(66)]
    ds1 = v_reads(i - 1) if pv else []
    ds2 = k_reads(i + 2) if i + 2 <= 63 else []
    n = i >> 1
    dma, post = [], None
    if i % 2 == 0 and n + 4 <= 32 and i <= 56: dma, post = kv_dma('K', n + 4)
    if i % 2 == 1 and n + 2 <= 31: dma, post = kv_dma('V', n + 2)
    exps = [];
    if sm:
        b = i & 1
        A_ = [(qb, kb, h) for qb in (0, 1) for kb in range(2) for h in range(2)]
        B_ = [(qb, kb, h) for qb in (2, 3) for kb in range(2) for h in range(2)]
        for x, y in zip(A_, B_): exps += [(x, 0), (x, 1), (y, 0), (y, 1)]
    ready = []
    for g in range(66):
        ty = types[g]
        cap = 0
        if ty == 'E':
            if exps:
                (qb, kb, h), e = exps.pop(0)
                r = S(b, kb, qb) + 2 * h + e
                fil[g].append("v_exp_f32 v%d, v%d" % (r, r))
                if qb < 2: ready.append((g + 1, "v_add_f32 v%d, v%d, v%d" % (vL + qb, vL + qb, r)))
                if e == 1: ready.append((g + 1, "v_cvt_pk_bf16_f32 v%d, v%d, v%d" % (P(b, qb) + 2 * kb + h, r - 1, r)))
        elif ty == 'D':
            q = ds1 if g < 32 else ds2
            if q: fil[g].append(q.pop(0)); cap = 1
            else: cap = 2
        elif ty == 'M':
            if dma:
                pre, d = dma.pop(0)
                if pre: sal[g - 1].append(pre)
                fil[g].append(d)
                if not dma: sal[g + 1].append(post)
            else: cap = 2
        else: cap = 2
        while cap and ready and ready[0][0] <= g:
            fil[g].append(ready.pop(0)[1]); cap -= 1
    assert not ready and not exps and not ds1 and not ds2 and not dma
    for g in (15, 31, 47, 65): sal[g].append(W('lg'))
    if i % 2 == 0 and i <= 62:
        sal[30].append(W('vm', ["K%d" % (n + 1), "V%d" % n], auto=False))
        sal[32].append("s_barrier")
    for g in range(66):
        if mf[g]: t(mf[g])
        elif fil[g] and g and fil[g - 1] and not sal[g] and 'v_exp' in str(fil[g - 1][-1]): t("s_nop 0")
        assert len(sal[g]) <= 1
        t(sal[g]); t(fil[g])

def xlane(t, op, v, tmp):
    for sw in ("v_permlane16_swap_b32", "v_permlane32_swap_b32"):
        t(["v_mov_b32 v%d, v%d" % (b, a) for a, b in zip(v, tmp)])
        t("s_nop 1")
        t(["%s v%d, v%d" % (sw, a, b) for a, b in zip(v, tmp)])
        t(["%s v%d, v%d, v%d" % (op, a, a, b) for a, b in zip(v, tmp)])

def tile_max(t, m, b, init):
    for qb in range(4):
        vals = [S(b, kb, qb) + r for kb in range(2) for r in range(4)]
        if init:
            t("v_max3_f32 v%d, v%d, v%d, v%d" % (m[qb], vals[0], vals[1], vals[2]))
            t("v_max3_f32 v%d, v%d, v%d, v%d" % (m[qb], m[qb], vals[3], vals[4]))
            t("v_max3_f32 v%d, v%d, v%d, v%d" % (m[qb], m[qb], vals[5], vals[6]))
            t("v_max_f32 v%d, v%d, v%d" % (m[qb], m[qb], vals[7]))
        else:
            for k in range(4): t("v_max3_f32 v%d, v%d, v%d, v%d" % (m[qb], m[qb], vals[2 * k], vals[2 * k + 1]))
def set_negm(t, m):
    for qb in range(4):
        for r in range(4): t("v_sub_f32 v%d, 0, v%d" % (NM(qb) + r, m[qb]))

vPo, vPd = [228, 229, 230, 231, 232, 233, 235, 236, 237], 192
sPs, sPd = 74, 75
def pack_setup(t):
    a, b = vPd, vPd + 1
    for p in range(9):
        t("v_add_u32 v%d, %d, v%d" % (a, p * 1024, vL16))
        t("v_cvt_f32_u32 v%d, v%d\nv_add_f32 v%d, 0.5, v%d\nv_mul_f32 v%d, 0x3b638e39, v%d\nv_cvt_u32_f32 v%d, v%d" % (b, a, b, b, b, b, b, b))
        t("v_mad_u32_u24 v%d, v%d, s%d, v%d" % (vPo[p], b, sPs, a))
def pack_loads(t, tag=None):
    for p in range(9): t("buffer_load_dwordx4 %s, v%d, s[32:35], s%d offen" % (R('v', vPd + 4 * p, 4), vPo[p], sPs), tag)
def pack_stores(t):
    for p in range(9):
        t("buffer_store_dwordx4 %s, v%d, s[12:15], s%d offen offset:%d" % (R('v', vPd + 4 * p, 4), vL16, sPd, (p % 4) * 1024), 'cond')
        if p % 4 == 3: t("s_add_u32 s%d, s%d, 4096" % (sPd, sPd))

def gen_k1(stamps=False):
    t = T(); st = Stamps(stamps)
    t("s_cmp_ge_u32 s2, 256\ns_cbranch_scc1 k1_end")
    st(t, False)
    t("s_load_dwordx4 s[36:39], s[0:1], 8\ns_load_dwordx2 s[40:41], s[0:1], 24\ns_load_dwordx4 s[44:47], s[0:1], 48\ns_load_dwordx2 s[48:49], s[0:1], 88\ns_load_dwordx2 s[4:5], s[0:1], 32\ns_load_dwordx2 s[6:7], s[0:1], 64")
    L, Tm = vT, vT + 1
    t("v_lshrrev_b32 v%d, 6, v0\nv_and_b32 v%d, 63, v0\nv_lshlrev_b32 v%d, 4, v%d" % (Tm, L, vL16, L))
    t("v_readfirstlane_b32 s3, v%d" % Tm)
    t("s_and_b32 s%d, s2, 7\ns_lshl_b32 s%d, s%d, 2\ns_lshr_b32 s%d, s2, 3\ns_and_b32 s%d, s%d, 3\ns_add_u32 s%d, s%d, s%d" % (sJ, sJ, sJ, sR, sT, sR, sJ, sJ, sT))
    t("s_lshr_b32 s%d, s%d, 2\ns_and_b32 s%d, s%d, 1\ns_lshl_b32 s%d, s%d, 2\ns_add_u32 s%d, s%d, s3" % (sR, sR, sOdd, sJ, sT64, sR, sT64, sT64))
    t("s_mul_i32 s%d, s%d, %d" % (sX, sT64, 18 * 4096))
    t("s_lshl_b32 s%d, s3, 12" % sW4k)
    t("s_and_b32 s%d, s3, 1\ns_mul_i32 s%d, s%d, %d\ns_mul_i32 s%d, s%d, 288\ns_add_u32 s%d, s%d, s%d" % (sT, sW, sT, 32 * 9216, sT + 1, sJ, sW, sW, sT + 1))
    t("s_mul_i32 s%d, s3, 9216\ns_add_u32 s%d, s%d, 36864" % (sGreg, sQreg, sW4k))
    t("s_lshl_b32 s%d, s%d, 15\ns_lshr_b32 s%d, s3, 1\ns_lshl_b32 s%d, s%d, 18\ns_add_u32 s%d, s%d, s%d\ns_lshl_b32 s%d, s%d, 8\ns_add_u32 s%d, s%d, s%d"
      % (sQ0, sT, sT + 1, sT + 1, sT + 1, sQ0, sQ0, sT + 1, sT + 1, sJ, sQ0, sQ0, sT + 1))
    for p in range(1, 4): t("s_add_u32 s%d, s%d, %d" % (sQ0 + p, sQ0, p * 64512))
    t("s_lshr_b32 s%d, s%d, 1\ns_lshl_b32 s%d, s%d, 19\ns_add_u32 s%d, s%d, s%d\ns_mov_b32 s%d, s%d\ns_mov_b32 s%d, s%d" % (sKV0, sJ, sKV0, sKV0, sKV0, sKV0, sW4k, sK, sKV0, sV, sKV0))
    t("s_mov_b32 s%d, 0\ns_mov_b32 s%d, 0\ns_mov_b32 s%d, 0\ns_mov_b32 s%d, 0" % (sDslot, sRslot, sCnt, sRerun))
    t("s_lshl_b32 s%d, s%d, 5" % (sT + 2, sOdd))
    a, b, c = vT + 2, vT + 3, vT + 4
    for p in range(9):
        t("v_add_u32 v%d, %d, v%d" % (a, p * 1024, vL16))
        t("v_cvt_f32_u32 v%d, v%d\nv_add_f32 v%d, 0.5, v%d\nv_mul_f32 v%d, 0x3b638e39, v%d\nv_cvt_u32_f32 v%d, v%d" % (b, a, b, b, b, b, b, b))
        t("v_mul_u32_u24 v%d, 288, v%d\nv_sub_u32 v%d, v%d, v%d\nv_add_u32 v%d, s%d, v%d" % (c, b, a, a, c, a, sT + 2, a))
        t("v_subrev_u32 v%d, 288, v%d\nv_min_u32 v%d, v%d, v%d" % (c, a, a, a, c))
        t("v_bfe_u32 v%d, v%d, 2, 2\nv_lshlrev_b32 v%d, 3, v%d\nv_and_b32 v%d, 3, v%d\nv_add_u32 v%d, v%d, v%d" % (c, b, c, c, vGd + p, b, c, c, vGd + p))
        t("v_lshrrev_b32 v%d, 4, v%d\nv_lshl_add_u32 v%d, v%d, 2, v%d" % (b, b, c, b, c))
        t("v_mul_u32_u24 v%d, 9216, v%d\nv_add_u32 v%d, v%d, v%d" % (c, c, vGd + p, c, a))
        if p % 4: t("v_subrev_u32 v%d, %d, v%d" % (vGd + p, (p % 4) * 1024, vGd + p))
    r_, c_ = vT + 5, vT + 6
    t("v_lshrrev_b32 v%d, 4, v%d\nv_and_b32 v%d, 15, v%d" % (r_, L, c_, L))
    t("v_lshlrev_b32 v%d, 2, v%d\nv_xor_b32 v%d, v%d, v%d\nv_lshlrev_b32 v%d, 4, v%d\nv_lshl_add_u32 v%d, v%d, 13, v%d" % (a, r_, a, a, c_, a, a, vQd, r_, a))
    t("s_waitcnt lgkmcnt(0)")
    st(t)
    srd(t, 8, 48, 49, XN_SIZE, XN_OFF)
    t("s_cmp_lt_u32 s3, 2\ns_cselect_b32 s12, s44, s46\ns_cselect_b32 s13, s45, s47\ns_mov_b32 s14, %d\ns_mov_b32 s15, 0x20000" % (576 * 4608 * 2))
    srd(t, 16, 40, 41, 576 * 4096 * 2)
    t(xn_loads(0)); t("s_add_u32 s%d, s%d, 4096" % (sX, sX))
    def dma_all(n):
        t(w_dma_pre())
        for pre, d in w_dma(n):
            if pre: t(pre); t("s_nop 0")
            t(d)
        t(w_dma_post())
    dma_all(0)
    st(t)
    srd(t, 20, 36, 37, 8388608); srd(t, 24, 38, 39, 8388608); srd(t, 28, 48, 49, ACT_SIZE, ACT_OFF)
    for p in range(4):
        t("v_add_u32 v%d, %d, v%d\nv_xor_b32 v%d, v%d, v%d\nv_lshlrev_b32 v%d, 4, v%d\nv_lshl_add_u32 v%d, v%d, 8, v%d" % (a, 4 * p, r_, a, a, c_, a, a, vKd + p, r_, a))
    for p in range(2):
        t("v_add_u32 v%d, %d, v%d\nv_lshlrev_b32 v%d, 1, v%d\nv_xor_b32 v%d, v%d, v%d\nv_lshlrev_b32 v%d, 4, v%d\nv_lshl_add_u32 v%d, v%d, 8, v%d" % (a, 4 * p, r_, a, a, a, a, c_, a, a, vVd + p, r_, a))
    t("v_lshrrev_b32 v%d, 2, v%d\nv_and_b32 v%d, 3, v%d" % (a, L, b, L))
    t("v_mul_u32_u24 v%d, 288, v%d\nv_lshl_add_u32 v%d, v%d, 3, v%d" % (vGa, a, vGa, b, vGa))
    t("v_lshlrev_b32 v%d, 8, v%d\nv_lshl_add_u32 v%d, v%d, 4, v%d\nv_and_b32 v%d, 3, v%d" % (c, a, c, b, c, a, a))
    for s in range(4):
        t("v_xor_b32 v%d, %d, v%d\nv_lshl_add_u32 v%d, v%d, 6, v%d" % (b, s, a, vQa + s, b, c))
    t("v_mov_b32 v%d, %d\nv_mov_b32 v%d, 0\nds_write_b32 v%d, v%d" % (a, FLAG_LDS, b, a, b))
    for i in range(224): t("v_mov_b32 v%d, 0" % i)
    for i in range(192): t("v_accvgpr_write_b32 a%d, 0" % i)
    dma_all(1)
    st(t)
    t(W('vm', ["W0"])); t("s_waitcnt lgkmcnt(0)\ns_barrier")
    st(t)
    for x in range(5): t(tile_reads(x))
    t(W('lg'))
    t(".p2align 6")
    for n in range(9):
        if n < 7: t.mark("loop:k1_gq:%d" % n)
        gq_stage(t, n)
        if n < 7:
            t("s_add_u32 s%d, s%d, 1\ns_cmp_lt_u32 s%d, 7\ns_cbranch_scc1 k1_gq" % (sCnt, sCnt, sCnt))
        if n == 6: t.mark("end")
    st(t)
    t("s_mov_b32 s%d, 0xbfb8aa3b\ns_mov_b32 s%d, 0x3e0293ee" % (sC, sC + 1))
    t("s_mul_i32 s%d, s%d, 272\ns_lshr_b32 s%d, s%d, 1\ns_mul_i32 s%d, s%d, 9\ns_add_u32 s%d, s%d, s%d\ns_add_u32 s%d, s%d, 132\ns_lshl_b32 s%d, s%d, 12"
      % (sT, sT64, sT + 1, sJ, sT + 1, sT + 1, sT, sT, sT + 1, sT, sT, sT + 2, sT))
    t("s_mul_i32 s%d, s%d, 5\ns_add_u32 s%d, s%d, s%d\ns_sub_u32 s%d, s%d, 4\ns_lshl_b32 s%d, s%d, 12" % (sT + 1, sOdd, sT, sT, sT + 1, sT, sT, sT, sT))
    t("s_lshl_b32 s%d, s%d, 3\nv_add_u32 v%d, s%d, v%d" % (sT + 1, sOdd, vT + 9, sT + 1, vL16))
    tmp = [vT + k for k in range(4)]
    def silu_tile(g, u):
        t(["v_mul_f32 v%d, s%d, v%d" % (tmp[r], sC, g + r) for r in range(4)])
        t(["v_exp_f32 v%d, v%d" % (tmp[r], tmp[r]) for r in range(4)])
        t(["v_mul_f32 v%d, v%d, v%d" % (g + r, g + r, u + r) for r in range(4)])
        t(["v_add_f32 v%d, 1.0, v%d" % (tmp[r], tmp[r]) for r in range(4)])
        t(["v_rcp_f32 v%d, v%d" % (tmp[r], tmp[r]) for r in range(4)])
        t("s_nop 0")
        t(["v_mul_f32 v%d, v%d, v%d" % (g + r, g + r, tmp[r]) for r in (0, 1, 2, 3)])
    def gv(mat, tt, qb):
        return Gacc(mat, tt if tt < 7 else tt - 7, qb)[1]
    for m in range(5):
        if m == 3:
            t("s_nop 1")
            for k in range(64): t("v_accvgpr_read_b32 v%d, a%d" % (k, k))
        for qb in range(4):
            tiles = [2 * m, 2 * m + 1] if m < 4 else [8]
            d = gv(1, tiles[0], qb)
            for tt in tiles: silu_tile(gv(0, tt, qb), gv(1, tt, qb))
            for k, tt in enumerate(tiles):
                g = gv(0, tt, qb)
                t("v_cvt_pk_bf16_f32 v%d, v%d, v%d\nv_cvt_pk_bf16_f32 v%d, v%d, v%d" % (d + 2 * k, g, g + 1, d + 2 * k + 1, g + 2, g + 3))
            if m < 4: t("buffer_store_dwordx4 %s, v%d, s[28:31], s%d offen offset:%d" % (R('v', d, 4), vL16, sT, qb * 1024))
            else: t("buffer_store_dwordx2 %s, v%d, s[28:31], s%d offen offset:%d" % (R('v', d, 2), vT + 9, sT + 2, qb * 1024))
        if m < 3: t("s_add_u32 s%d, s%d, 4096" % (sT, sT))
    for qb in range(4):
        for s in range(4):
            tq = [64 + k for k in range(8)]
            for k in range(8): t("v_accvgpr_read_b32 v%d, a%d" % (tq[k], Qacc(2 * s + (k >> 2), qb)[1] + (k & 3)))
            for k in range(8): t("v_mul_f32 v%d, s%d, v%d" % (tq[k], sC + 1, tq[k]))
            for k in range(4): t("v_cvt_pk_bf16_f32 v%d, v%d, v%d" % (QF(qb, s) + k, tq[2 * k], tq[2 * k + 1]))
    t("v_lshrrev_b32 v%d, 4, v%d\nv_and_b32 v%d, 15, v%d\nv_lshrrev_b32 v%d, 4, v%d" % (L, vL16, c_, L, r_, L))
    for s in range(4):
        t("v_add_u32 v%d, %d, v%d\nv_xor_b32 v%d, v%d, v%d\nv_lshlrev_b32 v%d, 4, v%d\nv_lshl_add_u32 v%d, v%d, 8, v%d" % (a, 4 * s, r_, a, a, c_, a, a, vKa + s, c_, a))
    t("v_lshrrev_b32 v%d, 2, v%d\nv_and_b32 v%d, 3, v%d\nv_lshlrev_b32 v%d, 8, v%d\nv_lshl_add_u32 v%d, v%d, 3, v%d\nv_add_u32 v%d, 0x10000, v%d\nv_and_b32 v%d, 7, v%d" % (a, L, b, L, c, a, c, b, c, c, c, a, a))
    for db in range(8):
        t("v_xor_b32 v%d, %d, v%d\nv_lshl_add_u32 v%d, v%d, 5, v%d" % (b, db, a, vVa + db, b, c))
    t("v_mov_b32 v%d, 0x3f803f80" % a)
    for k in range(4): t("v_accvgpr_write_b32 a%d, v%d" % (aONE + k, a))
    t("s_mov_b32 s%d, 864" % sPs)
    pack_setup(t)
    t("s_cmp_lt_u32 s2, 128\ns_cselect_b32 s32, s4, s6\ns_cselect_b32 s33, s5, s7\ns_mov_b32 s34, %d\ns_mov_b32 s35, 0x20000" % (4096 * 1152))
    t("s_and_b32 s%d, s2, 127\ns_mul_i32 s%d, s%d, 36864\ns_mul_i32 s%d, s3, 288\ns_add_u32 s%d, s%d, s%d" % (sPs, sPs, sPs, sT, sPs, sPs, sT))
    srd(t, 12, 48, 49, 4 * WP_PLANE, WP_OFF)
    t("s_mul_i32 s%d, s3, 272\ns_add_u32 s%d, s%d, s2\ns_mul_i32 s%d, s%d, 9216" % (sPd, sPd, sPd, sPd, sPd))
    pack_loads(t)
    st(t)
    t("k1_att:")
    t(W('vm', ["K0"], auto=False)); t("s_barrier")
    t(k_reads(0))
    t("v_mov_b32 v%d, 0\nv_mov_b32 v%d, 0" % (vL, vL + 1))
    t(W('lg'))
    q0 = qk_mfmas(0, czero=True); k1r = k_reads(1)
    for g in range(32):
        t(q0[g])
        if g == 15: t(W('lg'))
        if g >= 16 and g % 4 == 0: t(k1r[(g - 16) // 4])
    t(k1r[4:])
    t("s_nop 3")
    t("s_cmp_lg_u32 s%d, 0\ns_cbranch_scc1 k1_havemax" % sRerun)
    m = [vT + k for k in range(4)]; m2 = [vT + 4 + k for k in range(4)]
    tile_max(t, m, 0, True)
    xlane(t, "v_max_f32", m, m2)
    set_negm(t, m)
    t("k1_havemax:")
    for kb in range(2):
        for qb in range(4):
            for r in range(4): t("v_add_f32 v%d, v%d, v%d" % (S(0, kb, qb) + r, S(0, kb, qb) + r, NM(qb)))
    t("s_mov_b32 s%d, 0" % sCnt)
    t(W('lg'))
    for i in range(65):
        if 2 <= i < 58 and (i - 2) % 8 == 0:
            if i == 2: t(".p2align 6")
            t.mark("loop:k1_al:%d" % i)
        att_step(t, i)
        if 2 <= i < 58 and (i - 2) % 8 == 7:
            t("s_add_u32 s%d, s%d, 1\ns_cmp_lt_u32 s%d, 7\ns_cbranch_scc1 k1_al" % (sCnt, sCnt, sCnt))
        if i == 57: t.mark("end")
        if i == 62:
            t("s_cmp_lg_u32 s%d, 0\ns_cbranch_scc1 k1_nopk" % sRerun)
            pack_stores(t)
            t("s_cmp_ge_u32 s2, 16\ns_cbranch_scc1 k1_nopk")
            srd(t, 32, 6, 7, 4608 * 1152)
            t("s_add_u32 s%d, s%d, %d\ns_add_u32 s%d, s%d, %d" % (sPs, sPs, 128 * 36864, sPd, sPd, 256 * 9216 - 8192))
            pack_loads(t, 'cond')
            t("k1_nopk:")
    st(t)
    l = [vL + k for k in range(4)]
    xlane(t, "v_add_f32", l[:2], m2[:2])
    t("v_accvgpr_read_b32 v%d, a%d\nv_accvgpr_read_b32 v%d, a%d" % (l[2], LA(2), l[3], LA(3)))
    t("s_mov_b32 s%d, 0x4f800000" % sT)
    t("v_max_f32 v%d, v%d, v%d\nv_add_f32 v%d, v%d, v%d\nv_add_f32 v%d, v%d, v%d\nv_add_f32 v%d, v%d, v%d" % (a, l[0], l[0], a, l[0], l[1], a, a, l[2], a, a, l[3]))
    t("v_cmp_nlt_f32 vcc, v%d, s%d" % (a, sT) if False else "v_cmp_ngt_f32 vcc, s%d, v%d" % (sT, a))
    t(["v_rcp_f32 v%d, v%d" % (x, x) for x in l])
    t("v_mov_b32 v%d, %d\nv_mov_b32 v%d, 1" % (a, FLAG_LDS, b))
    t("s_cbranch_vccz k1_ok\nds_write_b32 v%d, v%d\nk1_ok:" % (a, b))
    t("s_waitcnt lgkmcnt(0)\ns_barrier\nds_read_b32 v%d, v%d" % (c, a))
    t("s_mul_i32 s%d, s%d, 272\ns_lshl_b32 s%d, s%d, 2\ns_add_u32 s%d, s%d, s%d\ns_lshl_b32 s%d, s%d, 12" % (sT, sT64, sT + 1, sJ, sT, sT, sT + 1, sT, sT))
    k = 0
    for s in range(4):
        for qb in range(4):
            tq = [(k % 4) * 16 + x for x in range(8)]; d = (k % 4) * 16 + 8; k += 1
            for x in range(8): t("v_accvgpr_read_b32 v%d, a%d" % (tq[x], O(2 * s + (x >> 2), qb) + (x & 3)))
            for x in range(8): t("v_mul_f32 v%d, v%d, v%d" % (tq[x], l[qb], tq[x]))
            for x in range(4): t("v_cvt_pk_bf16_f32 v%d, v%d, v%d" % (d + x, tq[2 * x], tq[2 * x + 1]))
            t("buffer_store_dwordx4 %s, v%d, s[28:31], s%d offen offset:%d" % (R('v', d, 4), vL16, sT, qb * 1024))
        if s < 3: t("s_add_u32 s%d, s%d, 4096" % (sT, sT))
    t("s_cmp_ge_u32 s2, 16\ns_cbranch_scc1 k1_nopk2\ns_cmp_lg_u32 s%d, 0\ns_cbranch_scc1 k1_nopk2\ns_waitcnt vmcnt(16)" % sRerun)
    pack_stores(t)
    t("k1_nopk2:")
    t("s_waitcnt lgkmcnt(0)\nv_readfirstlane_b32 s%d, v%d\ns_nop 1" % (sT, c))
    t("s_andn2_b32 s%d, s%d, s%d\ns_cbranch_scc1 k1_fb" % (sT, sT, sRerun))
    st.dump(t, 48, STAMP_OFF, sT)
    body = finalize(t, 'k1')
    f = T()
    f("k1_fb:\ns_waitcnt vmcnt(0) lgkmcnt(0)\ns_barrier")
    f("s_mov_b32 s%d, 1\ns_mov_b32 s%d, s%d\ns_mov_b32 s%d, 0" % (sRerun, sK, sKV0, sCnt))
    f(["v_mov_b32 v%d, 0xff800000" % x for x in m])
    f("k1_fbl:")
    it, po = kv_dma('K', 0)
    for pre, d in it:
        if pre: f(pre); f("s_nop 0")
        f(d)
    f(po); f("s_waitcnt vmcnt(0)\ns_barrier")
    for blk in range(2):
        f(k_reads(blk)); f("s_waitcnt lgkmcnt(0)"); f(qk_mfmas(0, czero=True)); f("s_nop 7"); tile_max(f, m, 0, False)
    f("s_barrier\ns_add_u32 s%d, s%d, 1\ns_cmp_lt_u32 s%d, 32\ns_cbranch_scc1 k1_fbl" % (sCnt, sCnt, sCnt))
    xlane(f, "v_max_f32", m, m2); set_negm(f, m)
    f("s_mov_b32 s%d, s%d\ns_mov_b32 s%d, s%d" % (sK, sKV0, sV, sKV0))
    for (wh, n) in [('K', 0), ('K', 1), ('K', 2), ('K', 3), ('V', 0), ('V', 1)]:
        it, po = kv_dma(wh, n)
        for pre, d in it:
            if pre: f(pre); f("s_nop 0")
            f(d)
        f(po)
    f("s_waitcnt vmcnt(0)\ns_branch k1_att")
    fb = finalize(f, 'k1fb')
    return head("k1_kernel") + body + "k1_end:\ns_endpgm\n" + fb + kd("k1_kernel", 512, 102, 256)
if __name__ == "__main__":
    s = gen_k1(True); print(len(s.split("\n")))
```

```python
from fw import *
from k0 import ACT_OFF, ACT_SIZE, SLAB_OFF, STAMP_OFF, WP_OFF, WP_PLANE
MF = "v_mfma_f32_16x16x32_bf16"
ST = 36864
K2_LDS = 4 * ST + 64
OPT = set()
PFD = 7
sQ, sRB, sCB, sT64, sTile, sW, sB, sDslot, sRslot, sDelta, sCnt, sN, sGreg, sNeg, sT = 50, 51, 52, 53, 54, 55, 58, 59, 60, 61, 62, 63, 64, 65, 66
def ACC(t, b): return (2 * t + b) * 4
def BF(ks, b): return (ks % 8) * 8 + 4 * b
def AF(t): return 64 + 4 * t
vL16, vA, vT = 72, 73, 74
LOOK = 7
def reads(x):
    ks, t = divmod(x, 9)
    return [I("ds_read_b64_tr_b16 %s, v%d offset:%d" % (R('a', AF(t) + 2 * a, 2), vA, ks * 9216 + a * 4608 + 32 * t)) for a in range(2)]
def w_dma(n):
    it = []
    for p in range(9):
        pre = "s_add_u32 m0, s%d, %d" % (sT, (p // 4) * 4096) if p % 4 == 0 else None
        it.append((pre, I("buffer_load_dwordx4 v%d, s[12:15], s%d offen offset:%d lds" % (vL16, sW + p // 4, (p % 4) * 1024), "W%d" % n)))
    return it
def w_pre(): return ["s_add_u32 s%d, s%d, s%d" % (sT, sDslot, sGreg)]
def w_post():
    return ["s_add_u32 s%d, s%d, %d" % (sW + k, sW + k, ST) for k in range(3)] + ["s_add_u32 s%d, s%d, %d" % (sDslot, sDslot, ST),
            "s_cmp_ge_u32 s%d, %d" % (sDslot, 4 * ST), "s_cselect_b32 s%d, 0, s%d" % (sDslot, sDslot)]
def b_loads(ks):
    return [I("buffer_load_dwordx4 %s, v%d, s[8:11], s%d offen offset:%d" % (R('a', BF(ks, b), 4), vL16, sB, b * 1024)) for b in range(2)]

def stage(t, n):
    G = 72
    sal = [[] for _ in range(G)]; vm = [None] * G; ds = [[] for _ in range(G)]; va = [[] for _ in range(G)]
    for k in range(4):
        gk = 4 * n + k
        bl = b_loads(gk + 7)
        vm[18 * k + 1] = bl[0]; vm[18 * k + 3] = bl[1]
        sal[18 * k + 4].append("s_add_u32 s%d, s%d, 4096" % (sB, sB))
        sal[18 * k + 16].append(W('vm'))
    sal[18 + 0].append(W('vm', ["W%d" % (n + 1)], auto=False))
    sal[18 + 1].append("s_barrier")
    sal[18 + 2].append(w_pre()[0])
    pos = [18 + 7, 18 + 10, 18 + 13, 18 + 15, 36 + 7, 36 + 10, 36 + 13, 36 + 15, 54 + 7]
    for (pre, d), g in zip(w_dma(n + 3), pos):
        if pre: sal[g - 1].append(pre)
        vm[g] = d
    for x, g in zip(w_post(), [54 + 8, 54 + 9, 54 + 10, 54 + 12, 54 + 13, 54 + 14]): sal[g].append(x)
    sal[36 + 0].append("s_add_u32 s%d, s%d, %d" % (sRslot, sRslot, ST))
    sal[36 + 1].append("s_cmp_ge_u32 s%d, %d" % (sRslot, 4 * ST))
    sal[36 + 2].append("s_cselect_b32 s%d, s%d, %d" % (sDelta, sNeg, ST))
    sal[36 + 3].append("s_cselect_b32 s%d, 0, s%d" % (sRslot, sRslot))
    q = []
    for tau in range(36):
        x = tau + LOOK
        rd = reads(x % 36)
        q += [(2 * tau, rd[0], x), (2 * tau, rd[1], x)]
    upd_done = False
    for g in range(G):
        if vm[g] is not None: continue
        cap = 2
        while cap and q and q[0][0] <= g:
            if q[0][2] >= 36 and not upd_done:
                va[g].append("v_add_u32 v%d, s%d, v%d" % (vA, sDelta, vA)); upd_done = True; break
            ds[g].append(q.pop(0)[1]); cap -= 1
            if not (q and q[0][0] + 1 <= g): break
    assert not q, len(q)
    for g in range(5, G, 6):
        assert not sal[g], g
        sal[g].append(W('lg'))
    for g in range(G):
        k, r = divmod(g, 18); tt, b = divmod(r, 2)
        acc = R('v', ACC(tt, b), 4)
        t("%s %s, %s, %s, %s" % (MF, acc, R('a', AF(tt), 4), R('a', BF(4 * n + k, b), 4), acc))
        assert len(sal[g]) <= 1, (g, sal[g])
        t(sal[g]); t(ds[g]); t(va[g])
        if vm[g] is not None and not (('nodma' in OPT and 'lds' in vm[g].text) or ('nob' in OPT and 'lds' not in vm[g].text)): t(vm[g])

def block(): return 320 if 'pf' in OPT else 256

def gen_k2(stamps=False):
    t = T(); st = Stamps(stamps)
    t("s_cmp_ge_u32 s2, 256\ns_cbranch_scc1 k2_end")
    st(t, False)
    t("s_load_dwordx2 s[36:37], s[0:1], 0\ns_load_dwordx2 s[42:43], s[0:1], 72\ns_load_dwordx4 s[44:47], s[0:1], 80")
    L, a, b, c = vT, vT + 1, vT + 2, vT + 3
    t("v_lshrrev_b32 v%d, 6, v0\nv_and_b32 v%d, 63, v0\nv_lshlrev_b32 v%d, 4, v%d" % (a, L, vL16, L))
    t("v_readfirstlane_b32 s3, v%d" % a)
    t("s_and_b32 s%d, s2, 3\ns_bfe_u32 s%d, s2, 0x10002\ns_lshl_b32 s%d, s%d, 3\ns_lshr_b32 s%d, s2, 5\ns_add_u32 s%d, s%d, s%d\ns_bfe_u32 s%d, s2, 0x20003"
      % (sQ, sRB, sRB, sRB, sT, sRB, sRB, sT, sCB))
    t("s_lshl_b32 s%d, s%d, 2\ns_add_u32 s%d, s%d, s%d" % (sTile, sRB, sTile, sTile, sCB))
    t("s_lshl_b32 s%d, s%d, 1\ns_bfe_u32 s%d, s3, 0x10001\ns_add_u32 s%d, s%d, s%d" % (sT64, sRB, sT, sT64, sT64, sT))
    sNk, sA0 = sT + 2, sT + 4
    t("s_cmp_lt_u32 s%d, 2\ns_cselect_b32 s%d, 64, 72\ns_cselect_b32 s%d, 0, 128\ns_and_b32 s%d, s%d, 1\ns_mul_i32 s%d, s%d, s%d\ns_add_u32 s%d, s%d, s%d"
      % (sQ, sNk, sA0, sT, sQ, sT, sT, sNk, sA0, sA0, sT))
    t("s_lshr_b32 s%d, s%d, 3" % (sN, sNk))
    t("s_mul_i32 s%d, s%d, 272\ns_add_u32 s%d, s%d, s%d\ns_add_u32 s10, s%d, s%d\ns_lshl_b32 s10, s10, 12\ns_lshl_b32 s%d, s%d, 12" % (sB, sT64, sB, sB, sA0, sB, sNk, sB, sB))
    t("s_and_b32 s%d, s3, 1\ns_lshl_b32 s%d, s%d, 11\ns_add_u32 s%d, s%d, s%d" % (sT, sT, sT, sB, sB, sT))
    t("s_mul_i32 s%d, s%d, 272\ns_add_u32 s%d, s%d, s%d\ns_add_u32 s14, s%d, s%d\ns_mul_i32 s14, s14, 9216\ns_add_u32 s%d, s%d, s3\ns_mul_i32 s%d, s%d, 9216"
      % (sW, sCB, sW, sW, sA0, sW, sNk, sW, sW, sW, sW))
    t("s_add_u32 s%d, s%d, 4096\ns_add_u32 s%d, s%d, 8192" % (sW + 1, sW, sW + 2, sW))
    t("s_mul_i32 s%d, s3, 9216\ns_mov_b32 s%d, 0\ns_mov_b32 s%d, 0\ns_mov_b32 s%d, 0\ns_mov_b32 s%d, 0x%x" % (sGreg, sDslot, sRslot, sCnt, sNeg, (-3 * ST) & 0xffffffff))
    t("s_waitcnt lgkmcnt(0)")
    st(t)
    t("s_add_u32 s8, s46, %d\ns_addc_u32 s9, s47, 0\ns_mov_b32 s11, 0x20000" % ACT_OFF)
    t("s_add_u32 s12, s46, %d\ns_addc_u32 s13, s47, 0\ns_mov_b32 s15, 0x20000" % WP_OFF)
    if block() == 320: t("s_cmp_eq_u32 s3, 4\ns_cbranch_scc1 k2_pf")
    def dma_all(n):
        t(w_pre())
        for pre, d in w_dma(n):
            if pre: t(pre); t("s_nop 0")
            t(d)
        t(w_post())
    for ks in range(2): t(b_loads(ks)); t("s_add_u32 s%d, s%d, 4096" % (sB, sB))
    dma_all(0)
    srd(t, 16, 36, 37, 2048 * 1152); srd(t, 20, 42, 43, 2048 * 1152); srd(t, 24, 44, 45, 256)
    srd(t, 28, 46, 47, 64 * 4 * 73728, SLAB_OFF)
    t("v_lshrrev_b32 v%d, 2, v%d\nv_and_b32 v%d, 3, v%d\nv_mul_u32_u24 v%d, 288, v%d\nv_lshl_add_u32 v%d, v%d, 3, v%d" % (a, L, b, L, vA, a, vA, b, vA))
    for i in range(72): t("v_mov_b32 v%d, 0" % i)
    for ks in range(2, 4): t(b_loads(ks)); t("s_add_u32 s%d, s%d, 4096" % (sB, sB))
    dma_all(1)
    for ks in range(4, 7): t(b_loads(ks)); t("s_add_u32 s%d, s%d, 4096" % (sB, sB))
    dma_all(2)
    st(t)
    t(W('vm', ["W0"])); t("s_barrier")
    st(t)
    for x in range(LOOK): t(reads(x))
    t(W('lg'))
    t(".p2align 6")
    for it in range(9):
        t.mark("loop:k2_l:%d" % it)
        stage(t, 2 * it); stage(t, 2 * it + 1)
        t("s_add_u32 s%d, s%d, 1\ns_cmp_lt_u32 s%d, s%d\ns_cbranch_scc1 k2_l" % (sCnt, sCnt, sCnt, sN))
    t.mark("end")
    st(t)
    sS, sO = sT + 5, sT + 6
    t("s_lshl_b32 s%d, s%d, 4\ns_add_u32 s%d, s%d, s3\ns_mul_i32 s%d, s%d, 18432" % (sS, sTile, sS, sS, sS, sS))
    t("v_and_b32 v%d, 15, v%d\nv_lshrrev_b32 v%d, 4, v%d\nv_mul_u32_u24 v%d, 1152, v%d\nv_lshl_add_u32 v%d, v%d, 3, v%d" % (a, L, b, L, a, a, a, b, a))
    t("s_lshl_b32 s%d, s%d, 1\ns_and_b32 s%d, s3, 1\ns_add_u32 s%d, s%d, s%d\ns_mul_i32 s%d, s%d, %d\ns_mul_i32 s%d, s%d, 288\ns_add_u32 s%d, s%d, s%d"
      % (sO, sT64, sT, sO, sO, sT, sO, sO, 32 * 1152, sT, sCB, sO, sO, sT))
    t("s_and_b32 s%d, s%d, 1\ns_mul_i32 s%d, s%d, %d\ns_add_u32 s%d, s%d, s%d" % (sT, sQ, sT, sT, 16 * 1152, sO, sO, sT))
    t("v_mov_b32 v%d, 1\nv_mov_b32 v%d, 0" % (b, c))
    t("s_waitcnt vmcnt(0) lgkmcnt(0)")
    t("s_cmp_eq_u32 s%d, 1\ns_cbranch_scc1 k2_q1\ns_cmp_eq_u32 s%d, 2\ns_cbranch_scc1 k2_q2\ns_cmp_eq_u32 s%d, 3\ns_cbranch_scc1 k2_q3" % (sQ, sQ, sQ))
    n0 = st.n
    def tail(t, q):
        st.n = n0
        own = [k for k in range(18) if k % 4 == q]
        X = 80
        free = [4 * k for k in range(18) if k % 4 != q] + [92 + 4 * k for k in range(6)]
        def GT(x, i): return free[5 * (x - 1) + i]
        for i, k in enumerate(own):
            t("buffer_load_dwordx2 %s, v%d, s[16:19], s%d offen offset:%d" % (R('v', X + 2 * i, 2), a, sO, 32 * (k // 2)))
        t("s_add_u32 s%d, s%d, %d" % (sT, sS, q * 73728))
        for k in range(18):
            if k % 4 != q: t("buffer_store_dwordx4 %s, v%d, s[28:31], s%d offen offset:%d sc1" % (R('v', 4 * k, 4), vL16, sT, (k % 4) * 1024))
            if k % 4 == 3: t("s_add_u32 s%d, s%d, 4096" % (sT, sT))
        t("s_lshl_b32 s%d, s%d, 2" % (sT, sTile))
        t("s_waitcnt vmcnt(0)\ns_barrier")
        st(t)
        t("s_cmp_lg_u32 s3, 0\ns_cbranch_scc1 k2_w%d" % q)
        t("s_mov_b64 exec, 1\nbuffer_atomic_add v%d, v%d, s[24:27], s%d offen sc1" % (b, c, sT))
        t("k2_p%d:\nbuffer_load_dword v%d, v%d, s[24:27], s%d offen sc1\ns_waitcnt vmcnt(0)\nv_readfirstlane_b32 s%d, v%d\ns_nop 1\ns_cmp_lt_u32 s%d, 4\ns_cbranch_scc1 k2_p%d" % (q, b, c, sT, sT + 1, b, sT + 1, q))
        t("s_mov_b64 exec, -1")
        t("k2_w%d:\ns_barrier" % q)
        st(t)
        for x in (1, 2, 3):
            for i, k in enumerate(own):
                t("s_add_u32 s%d, s%d, %d" % (sT, sS, (q ^ x) * 73728 + (k // 4) * 4096))
                t("buffer_load_dwordx4 %s, v%d, s[28:31], s%d offen offset:%d sc1" % (R('v', GT(x, i), 4), vL16, sT, (k % 4) * 1024))
        t("s_mov_b32 s%d, 0xbfb8aa3b\ns_mov_b32 s%d, 0xffff0000" % (sT, sT + 1))
        for i, k in enumerate(own):
            t(W('vm'))
            A_ = [4 * k + r for r in range(4)]; B_ = [GT(2, i) + r for r in range(4)]
            t(["v_add_f32 v%d, v%d, v%d" % (A_[r], A_[r], GT(1, i) + r) for r in range(4)])
            t(["v_add_f32 v%d, v%d, v%d" % (B_[r], B_[r], GT(3, i) + r) for r in range(4)])
            s_, f_ = (A_, B_) if q < 2 else (B_, A_)
            e = [free[15 + 2 * (i % 2)] + r for r in range(4)]; xx = [free[16 + 2 * (i % 2)] + r for r in range(4)]
            t(["v_mul_f32 v%d, s%d, v%d" % (e[r], sT, f_[r]) for r in range(4)])
            t(["v_exp_f32 v%d, v%d" % (e[r], e[r]) for r in range(4)])
            t(["v_mul_f32 v%d, v%d, v%d" % (s_[r], s_[r], f_[r]) for r in range(4)])
            t(["v_add_f32 v%d, 1.0, v%d" % (e[r], e[r]) for r in range(4)])
            t(["v_rcp_f32 v%d, v%d" % (e[r], e[r]) for r in range(4)])
            t("v_lshlrev_b32 v%d, 16, v%d\nv_lshlrev_b32 v%d, 16, v%d\nv_and_b32 v%d, s%d, v%d\nv_and_b32 v%d, s%d, v%d" % (xx[0], X + 2 * i, xx[2], X + 2 * i + 1, xx[1], sT + 1, X + 2 * i, xx[3], sT + 1, X + 2 * i + 1))
            t(["v_fmac_f32 v%d, v%d, v%d" % (xx[r], s_[r], e[r]) for r in range(4)])
            t("v_cvt_pk_bf16_f32 v%d, v%d, v%d\nv_cvt_pk_bf16_f32 v%d, v%d, v%d" % (e[0], xx[0], xx[1], e[1], xx[2], xx[3]))
            t("buffer_store_dwordx2 %s, v%d, s[20:23], s%d offen offset:%d" % (R('v', e[0], 2), a, sO, 32 * (k // 2)))
        st.dump(t, 46, STAMP_OFF + 65536, sT)
    tail(t, 0)
    out = head("k2_kernel") + finalize(t, 'k2') + "k2_end:\ns_endpgm\n"
    for q in (1, 2, 3):
        f = T(); f("k2_q%d:" % q); tail(f, q); f("s_endpgm")
        out += finalize(f, 'k2q%d' % q)
    if block() == 320:
        f = T(); f("k2_pf:")
        f("v_and_b32 v%d, 31, v%d\nv_lshlrev_b32 v%d, 7, v%d\nv_lshrrev_b32 v%d, 5, v%d\nv_mul_u32_u24 v%d, %d, v%d\nv_add_u32 v%d, v%d, v%d" % (a, L, a, a, b, L, b, 272 * 4096, b, a, a, b))
        f("s_mov_b32 s10, %d" % ACT_SIZE)
        f("s_add_u32 s%d, s%d, %d\ns_lshl_b32 s%d, s%d, 12\ns_add_u32 s%d, s%d, s%d" % (sB, sB, 3 * 16384, sT, sCB, sB, sB, sT))
        f("v_lshlrev_b32 v%d, 7, v%d\nv_cmp_gt_u32 vcc, 36, v%d\nv_mov_b32 v%d, 0x7fffffff\ns_nop 1\nv_cndmask_b32 v%d, v%d, v%d, vcc" % (b, L, L, c, b, c, b))
        f("s_and_b32 s%d, s%d, 7\ns_mul_i32 s%d, s%d, 4608\ns_add_u32 s%d, s%d, s%d\ns_add_u32 s%d, s%d, %d" % (sT, sRB, sT, sT, sW, sW, sT, sW, sW, 2 * ST))
        f("s_lshl_b32 s%d, s%d, 1\ns_mov_b32 s%d, 3" % (sN, sN, sCnt))
        def touch():
            f("buffer_load_dword v0, v%d, s[8:11], s%d offen\nbuffer_load_dword v1, v%d, s[12:15], s%d offen" % (a, sB, b, sW))
            f("s_add_u32 s%d, s%d, 16384\ns_add_u32 s%d, s%d, %d\ns_add_u32 s%d, s%d, 1" % (sB, sB, sW, sW, ST, sCnt, sCnt))
        for k in range(PFD - 3): touch()
        f("s_barrier\ns_mov_b32 s%d, 0" % sT)
        f("k2_pfl:\ns_cmp_ge_u32 s%d, s%d\ns_cbranch_scc1 k2_pfs" % (sCnt, sN))
        touch()
        f("k2_pfs:\ns_barrier\ns_add_u32 s%d, s%d, 1\ns_cmp_lt_u32 s%d, s%d\ns_cbranch_scc1 k2_pfl" % (sT, sT, sT, sN))
        f("s_endpgm")
        out += finalize(f, 'k2pf')
    return out + kd("k2_kernel", 116 + 100, 102, 116)
if __name__ == "__main__":
    s = gen_k2(True); print(len(s.split("\n")))
```

```python
import sys
from k0 import gen_k0
from k1 import gen_k1
NAME = "recurrent_scan__gqa_block_cached__glu_gated_swiglu__prompt"
def build(out, stamps=False, k2=True, **kw):
    ref = open("cdna_kernels/%s.s.ref" % NAME).read().split("\n")
    hdr = [l for l in ref if l.startswith(";") and "@launch" not in l and "Override launch" not in l and "grid=ceil" not in l]
    s = "\n".join(hdr) + "\n"
    s += "; @launch kernel=k0_kernel grid=(256,1,1) block=(64,1,1) lds=0\n"
    s += "; @launch kernel=k1_kernel grid=(256,1,1) block=(256,1,1) lds=163840\n"
    if k2:
        from k2 import gen_k2, K2_LDS, block
        s += "; @launch kernel=k2_kernel grid=(256,1,1) block=(%d,1,1) lds=%d\n" % (block(), K2_LDS)
    s += '.amdgcn_target "amdgcn-amd-amdhsa--gfx950"\n'
    s += gen_k0(stamps) + gen_k1(stamps)
    if k2: s += gen_k2(stamps)
    open(out, "w").write(s)
if __name__ == "__main__":
    import k2, k1, k0
    k0.OPT.update(sys.argv[2:]); k1.OPT.update(sys.argv[2:])
    k2.OPT.update(sys.argv[2:])
    build(sys.argv[1], stamps="stamps" in sys.argv, k2="nok2" not in sys.argv)
```

```python
import sys
from k0 import gen_k0
from k1 import gen_k1
NAME = "recurrent_scan__gqa_block_cached__glu_gated_swiglu__prompt"
def gen_k3():
    from fw import T, srd, finalize, head, kd
    from k0 import STAMP_OFF
    t = T()
    t("s_cmp_ge_u32 s2, 1\ns_cbranch_scc1 k3_end\ns_load_dwordx4 s[4:7], s[0:1], 80\ns_waitcnt lgkmcnt(0)")
    srd(t, 8, 6, 7, 1 << 20, STAMP_OFF); srd(t, 12, 4, 5, 256)
    wg = 77 * 256
    sel = [(131072, 11), (131072, 0), (0, 11), (0, 0), (65536, 11), (65536, 0), (0, 4), (0, 5), (0, 6), (0, 7), (0, 8), (65536, 3), (65536, 4), (65536, 5), (65536, 6), (65536, 7)]
    t("v_mov_b32 v30, 0")
    for k, (o, w) in enumerate(sel):
        t("s_mov_b32 s16, %d\nbuffer_load_dword v%d, v30, s[8:11], s16 offen" % (o + wg + 4 * w, 4 + k))
    t("s_waitcnt vmcnt(0)")
    for k in range(1, 6): t("v_sub_u32 v%d, v%d, v4" % (4 + k, 4 + k))
    t("s_mov_b64 exec, 1")
    for k in range(4): t("buffer_store_dwordx4 v[%d:%d], v30, s[12:15], 0 offen offset:%d" % (4 + 4 * k, 7 + 4 * k, 16 * k))
    return head("k3_kernel") + finalize(t, 'k3') + "k3_end:\ns_endpgm\n" + kd("k3_kernel", 32, 32, 32)
def build(out, stamps=False, k2=True, diag=False, **kw):
    ref = open("cdna_kernels/%s.s.ref" % NAME).read().split("\n")
    hdr = [l for l in ref if l.startswith(";") and "@launch" not in l and "Override launch" not in l and "grid=ceil" not in l]
    s = "\n".join(hdr) + "\n"
    s += "; @launch kernel=k0_kernel grid=(256,1,1) block=(64,1,1) lds=0\n"
    s += "; @launch kernel=k1_kernel grid=(256,1,1) block=(256,1,1) lds=163840\n"
    if k2:
        from k2 import gen_k2, K2_LDS, block
        s += "; @launch kernel=k2_kernel grid=(256,1,1) block=(%d,1,1) lds=%d\n" % (block(), K2_LDS)
    if diag: s += "; @launch kernel=k3_kernel grid=(1,1,1) block=(64,1,1) lds=0\n"
    s += '.amdgcn_target "amdgcn-amd-amdhsa--gfx950"\n'
    s += gen_k0(stamps) + gen_k1(stamps)
    if k2: s += gen_k2(stamps)
    if diag: s += gen_k3()
    open(out, "w").write(s)
if __name__ == "__main__":
    import k2, k1, k0
    k0.OPT.update(sys.argv[2:]); k1.OPT.update(sys.argv[2:])
    k2.OPT.update(sys.argv[2:])
    build(sys.argv[1], stamps="stamps" in sys.argv, k2="nok2" not in sys.argv, diag="diag" in sys.argv)
```

```python
import sys
from k0 import gen_k0
from k1 import gen_k1
NAME = "recurrent_scan__gqa_block_cached__glu_gated_swiglu__prompt"
def gen_k3():
    from fw import T, srd, finalize, head, kd
    from k0 import STAMP_OFF
    t = T()
    t("s_cmp_ge_u32 s2, 1\ns_cbranch_scc1 k3_end\ns_load_dwordx4 s[4:7], s[0:1], 80\ns_waitcnt lgkmcnt(0)")
    srd(t, 8, 6, 7, 1 << 20, STAMP_OFF); srd(t, 12, 4, 5, 256)
    wg = 77 * 256
    sel = [(131072, 11), (131072, 0), (0, 11), (0, 0), (65536, 11), (65536, 0), (0, 4), (0, 5), (0, 6), (0, 7), (0, 8), (65536, 3), (65536, 4), (65536, 5), (65536, 6), (65536, 7)]
    t("v_mov_b32 v30, 0")
    for k, (o, w) in enumerate(sel):
        t("s_mov_b32 s16, %d\nbuffer_load_dword v%d, v30, s[8:11], s16 offen" % (o + wg + 4 * w, 4 + k))
    t("s_waitcnt vmcnt(0)")
    for k in range(1, 6): t("v_sub_u32 v%d, v%d, v4" % (4 + k, 4 + k))
    t("s_mov_b64 exec, 1")
    for k in range(4): t("buffer_store_dwordx4 v[%d:%d], v30, s[12:15], 0 offen offset:%d" % (4 + 4 * k, 7 + 4 * k, 16 * k))
    return head("k3_kernel") + finalize(t, 'k3') + "k3_end:\ns_endpgm\n" + kd("k3_kernel", 32, 32, 32)
def build(out, stamps=False, k2=True, diag=False, **kw):
    ref = open("cdna_kernels/%s.s.ref" % NAME).read().split("\n")
    hdr = [l for l in ref if l.startswith(";") and "@launch" not in l and "Override launch" not in l and "grid=ceil" not in l]
    s = "\n".join(hdr) + "\n"
    s += "; @launch kernel=k0_kernel grid=(256,1,1) block=(64,1,1) lds=0\n"
    s += "; @launch kernel=k1_kernel grid=(256,1,1) block=(256,1,1) lds=163840\n"
    if k2:
        from k2 import gen_k2, K2_LDS, block
        s += "; @launch kernel=k2_kernel grid=(256,1,1) block=(%d,1,1) lds=%d\n" % (block(), K2_LDS)
    if diag: s += "; @launch kernel=k3_kernel grid=(1,1,1) block=(64,1,1) lds=0\n"
    s += '.amdgcn_target "amdgcn-amd-amdhsa--gfx950"\n'
    s += gen_k0(stamps) + gen_k1(stamps)
    if k2: s += gen_k2(stamps)
    if diag: s += gen_k3()
    import re
    O = set(sys.argv[2:])
    L = s.split("\n"); cur = None
    for i, l in enumerate(L):
        m = re.match(r"(k\d)_kernel:", l)
        if m: cur = m.group(1)
        def add(f):
            L[i] = L[i].replace(" lds", " " + f + " lds") if L[i].endswith(" lds") else L[i] + " " + f
        if cur == 'k1' and l.startswith("buffer_load"):
            if 'ntw' in O and ("s[12:15]" in l or "s[16:19]" in l): add("nt")
            if 'ntkv' in O and ("s[20:23]" in l or "s[24:27]" in l): add("nt")
            if 'ntp' in O and "s[32:35]" in l: add("nt")
        if cur == 'k0' and l.startswith("buffer_load") and 'ntx' in O: add("nt")
        if cur == 'k1' and l.startswith("buffer_store") and ("s[28:31]" in l or "s[12:15]" in l):
            if 'wt' in O: add("sc1")
            if 'wnt' in O: add("nt")
    s = "\n".join(L)
    open(out, "w").write(s)
if __name__ == "__main__":
    import k2, k1, k0
    k0.OPT.update(sys.argv[2:]); k1.OPT.update(sys.argv[2:])
    k2.OPT.update(sys.argv[2:])
    build(sys.argv[1], stamps="stamps" in sys.argv, k2="nok2" not in sys.argv, diag="diag" in sys.argv)
```

```python
import sys
from k0 import gen_k0
from k1 import gen_k1
NAME = "recurrent_scan__gqa_block_cached__glu_gated_swiglu__prompt"
def gen_k3():
    from fw import T, srd, finalize, head, kd
    from k0 import STAMP_OFF
    t = T()
    t("s_cmp_ge_u32 s2, 1\ns_cbranch_scc1 k3_end\ns_load_dwordx4 s[4:7], s[0:1], 80\ns_waitcnt lgkmcnt(0)")
    srd(t, 8, 6, 7, 1 << 20, STAMP_OFF); srd(t, 12, 4, 5, 256)
    wg = 77 * 256
    sel = [(131072, 11), (131072, 0), (0, 11), (0, 0), (65536, 11), (65536, 0), (0, 4), (0, 5), (0, 6), (0, 7), (0, 8), (65536, 3), (65536, 4), (65536, 5), (65536, 6), (65536, 7)]
    t("v_mov_b32 v30, 0")
    for k, (o, w) in enumerate(sel):
        t("s_mov_b32 s16, %d\nbuffer_load_dword v%d, v30, s[8:11], s16 offen" % (o + wg + 4 * w, 4 + k))
    t("s_waitcnt vmcnt(0)")
    for k in range(1, 6): t("v_sub_u32 v%d, v%d, v4" % (4 + k, 4 + k))
    t("s_mov_b64 exec, 1")
    for k in range(4): t("buffer_store_dwordx4 v[%d:%d], v30, s[12:15], 0 offen offset:%d" % (4 + 4 * k, 7 + 4 * k, 16 * k))
    for o in sys.argv[2:]:
        if o.startswith("spin"):
            a, b, amp, sh = map(int, o[4:].split("_"))
            t("v_readfirstlane_b32 s20, v%d" % (4 + b))
            if a > 0: t("v_readfirstlane_b32 s21, v%d\ns_nop 1\ns_sub_u32 s20, s20, s21" % (4 + a))
            t("s_nop 1\ns_mul_i32 s20, s20, %d\ns_lshr_b32 s20, s20, %d\ns_min_u32 s20, s20, 100000\ns_memrealtime s[22:23]\ns_waitcnt lgkmcnt(0)" % (amp, sh))
            t("k3_l:\ns_memrealtime s[24:25]\ns_waitcnt lgkmcnt(0)\ns_sub_u32 s26, s24, s22\ns_cmp_lt_u32 s26, s20\ns_cbranch_scc1 k3_l")
    return head("k3_kernel") + finalize(t, 'k3') + "k3_end:\ns_endpgm\n" + kd("k3_kernel", 32, 32, 32)
def build(out, stamps=False, k2=True, diag=False, **kw):
    ref = open("cdna_kernels/%s.s.ref" % NAME).read().split("\n")
    hdr = [l for l in ref if l.startswith(";") and "@launch" not in l and "Override launch" not in l and "grid=ceil" not in l]
    s = "\n".join(hdr) + "\n"
    s += "; @launch kernel=k0_kernel grid=(256,1,1) block=(64,1,1) lds=0\n"
    s += "; @launch kernel=k1_kernel grid=(256,1,1) block=(256,1,1) lds=163840\n"
    if k2:
        from k2 import gen_k2, K2_LDS, block
        s += "; @launch kernel=k2_kernel grid=(256,1,1) block=(%d,1,1) lds=%d\n" % (block(), K2_LDS)
    if diag: s += "; @launch kernel=k3_kernel grid=(1,1,1) block=(64,1,1) lds=0\n"
    s += '.amdgcn_target "amdgcn-amd-amdhsa--gfx950"\n'
    s += gen_k0(stamps) + gen_k1(stamps)
    if k2: s += gen_k2(stamps)
    if diag: s += gen_k3()
    import re
    O = set(sys.argv[2:])
    L = s.split("\n"); cur = None
    for i, l in enumerate(L):
        m = re.match(r"(k\d)_kernel:", l)
        if m: cur = m.group(1)
        def add(f):
            L[i] = L[i].replace(" lds", " " + f + " lds") if L[i].endswith(" lds") else L[i] + " " + f
        if cur == 'k1' and l.startswith("buffer_load"):
            if 'ntw' in O and ("s[12:15]" in l or "s[16:19]" in l): add("nt")
            if 'ntkv' in O and ("s[20:23]" in l or "s[24:27]" in l): add("nt")
            if 'ntp' in O and "s[32:35]" in l: add("nt")
        if cur == 'k0' and l.startswith("buffer_load") and 'ntx' in O: add("nt")
        if cur == 'k1' and l.startswith("buffer_store") and ("s[28:31]" in l or "s[12:15]" in l):
            if 'wt' in O: add("sc1")
            if 'wnt' in O: add("nt")
    s = "\n".join(L)
    open(out, "w").write(s)
if __name__ == "__main__":
    import k2, k1, k0
    k0.OPT.update(sys.argv[2:]); k1.OPT.update(sys.argv[2:])
    k2.OPT.update(sys.argv[2:])
    build(sys.argv[1], stamps="stamps" in sys.argv, k2="nok2" not in sys.argv, diag="diag" in sys.argv)
```
